```python
import torch

def _softmax(x, axis=-1):
    return torch.softmax(x, dim=axis)
def _gelu(x):
    return torch.nn.functional.gelu(x, approximate="tanh")
def _silu(x):
    return torch.nn.functional.silu(x)
def _sigmoid(x):
    return torch.sigmoid(x)
def _layernorm(x, axis=-1, eps=1e-5):
    m = x.mean(dim=axis, keepdim=True)
    v = x.var(dim=axis, keepdim=True, unbiased=False)
    return (x - m) / torch.sqrt(v + eps)
def _scatter_add(tgt, idx, src, axis=0):
    return tgt.clone().index_add_(axis, idx, src)
def _segment_sum(src, seg, n):
    out = torch.zeros((n,) + src.shape[1:], dtype=src.dtype)
    return out.index_add_(0, seg, src)
def _pad(x, pw):
    flat = tuple(v for pair in reversed(pw) for v in pair)
    return torch.nn.functional.pad(x, flat)

kernel_name = 'gated_mix__mha_block__dense_activation_mish__prompt'

def setup_inputs():

    _w = (lambda a: (lambda t: t.to(torch.bfloat16) if t.is_floating_point() else t)(torch.as_tensor(a)))
    def _A_setup():
        B, S, D, H = 1, 2048, 512, 32
        return {
            "x": _w((lambda *s: torch.randn(*s, dtype=torch.bfloat16) * 0.05)(B, S, D)),
            "wqkv": _w((lambda *s: torch.randn(*s, dtype=torch.bfloat16) * 0.8)(D, 3 * D)),
            "wo": _w((lambda *s: torch.randn(*s, dtype=torch.bfloat16) * 0.05)(D, D)),
        }
    _A_in = _A_setup()

    def _B_setup():
        B, S, D, F = 1, 2048, 512, 1376
        return {
            "x": _w((lambda *s: torch.randn(*s, dtype=torch.bfloat16) * 0.05)(B, S, D)),
            "w1": _w((lambda *s: torch.randn(*s, dtype=torch.bfloat16) * 12.8)(D, F) * (D ** -0.5)),
            "b1": _w((lambda *s: torch.randn(*s, dtype=torch.bfloat16) * 0.2)(F)),
            "w2": _w((lambda *s: torch.randn(*s, dtype=torch.bfloat16) * 0.1)(F, D) * (F ** -0.5)),
        }
    _B_in = _B_setup()

    return {
        "A_x": _A_in["x"],
        "A_wqkv": _A_in["wqkv"],
        "A_wo": _A_in["wo"],
        "B_x": _B_in["x"],
        "B_w1": _B_in["w1"],
        "B_b1": _B_in["b1"],
        "B_w2": _B_in["w2"],
        "gate_w": _w((lambda *s: torch.randn(*s, dtype=torch.bfloat16) * 0.05)(512) * 16.0),
    }

def reference(A_x, A_wqkv, A_wo, B_x, B_w1, B_b1, B_w2, gate_w):
    def _A_ref(x, wqkv, wo):
        B, S, D = x.shape
        H = 32
        Dh = D // H
        qkv = (lambda x, *d: x.permute(*d))((x @ wqkv).reshape(B, S, 3, H, Dh), 2, 0, 3, 1, 4)
        q, k, v = qkv[0], qkv[1], qkv[2]
        scores = torch.einsum("bhqd,bhkd->bhqk", q, k) * (Dh ** -0.5)
        p = _softmax(scores, axis=-1)
        o = torch.einsum("bhqk,bhkd->bhqd", p, v)
        return (lambda x, *d: x.permute(*d))(o, 0, 2, 1, 3).reshape(B, S, D) @ wo

    def _B_ref(x, w1, b1, w2):
        h = torch.einsum("bsd,df->bsf", x, w1) + b1
        sp = torch.log1p(torch.exp(-torch.abs(h))) + torch.where(h > 0, h, torch.zeros_like(h))
        act = h * torch.tanh(sp)
        return torch.einsum("bsf,fd->bsd", act, w2)

    x = A_x
    g = _sigmoid((x * gate_w).sum(-1, keepdims=True))
    a = _A_ref(x, A_wqkv, A_wo)
    b = _B_ref(x, B_w1, B_b1, B_w2)
    return g * a + (1 - g) * b
```

```python
import sys, struct

NAME = "gated_mix__mha_block__dense_activation_mish__prompt"

WS_QB = 0x000000
WS_QH = 0x200000
WS_QL = 0x400000
WS_KB = 0x600000
WS_VT = 0x800000
WS_ACT = 0xA00000
WS_OB = 0x1000000
WS_G = 0x1200000
WS_SIZE = 0x1300000

LOG2E = 1.4426950408889634


def f2u(x):
    return struct.unpack("<I", struct.pack("<f", x))[0]


class Asm:
    def __init__(self):
        self.lines = []
        self.lab = 0

    def __call__(self, s):
        for l in s.strip("\n").split("\n"):
            l = l.strip()
            if l:
                self.lines.append("    " + l if not l.endswith(":") else l)

    def label(self, p="L"):
        self.lab += 1
        return f"{p}_{self.lab}"

    def text(self):
        return "\n".join(self.lines) + "\n"


def vr(a, n):
    return f"v[{a}:{a+n-1}]"


def srd(A, d, lo, hi, size):
    A(f"""s_mov_b32 s{d}, s{lo}
    s_and_b32 s{d+1}, s{hi}, 0xffff
    s_mov_b32 s{d+2}, {size}
    s_mov_b32 s{d+3}, 0x20000""")


def bf16_round_pair(A, a, b, tmp):
    A(f"""v_cvt_pk_bf16_f32 v{tmp}, v{a}, v{b}
    v_lshlrev_b32 v{a}, 16, v{tmp}
    v_and_b32 v{b}, 0xffff0000, v{tmp}""")


def gen_k1(A):
    BUF = 45056
    A("k1_kernel:")
    A("""s_cmp_ge_u32 s2, 256
    s_cbranch_scc1 K1_END
    s_load_dwordx16 s[16:31], s[0:1], 0
    s_load_dwordx2 s[32:33], s[0:1], 80
    v_lshrrev_b32 v2, 6, v0
    v_and_b32 v1, 63, v0
    s_nop 0
    v_readfirstlane_b32 s3, v2
    s_lshr_b32 s4, s2, 3
    s_and_b32 s5, s2, 7
    s_waitcnt lgkmcnt(0)""")
    srd(A, 36, 16, 17, 2048 * 512 * 2)
    srd(A, 44, 32, 33, WS_SIZE)
    A("""s_cmp_ge_u32 s2, 248
    s_cbranch_scc1 K1_GATE""")
    srd(A, 48, 26, 27, 1376 * 2)
    A("""s_mov_b32 s42, %d
    s_mov_b32 s6, 2752
    s_cmp_lt_u32 s4, 16
    s_cselect_b32 s40, s18, s24
    s_cselect_b32 s41, s19, s25
    s_cselect_b32 s42, %d, s42
    s_mov_b32 s43, 0x20000
    s_cselect_b32 s6, 3072, s6
    s_cselect_b32 s8, 0, 16
    s_and_b32 s41, s41, 0xffff
    s_sub_u32 s8, s4, s8
    s_mul_i32 s7, s8, 96
    s_mul_i32 s9, s8, 3""" % (512 * 1376 * 2, 512 * 1536 * 2))
    A("""v_and_b32 v2, 31, v1
    v_lshrrev_b32 v3, 5, v1""")
    A("""v_lshrrev_b32 v4, 3, v1
    v_lshlrev_b32 v4, 10, v4
    v_and_b32 v5, 7, v1
    v_lshrrev_b32 v6, 4, v1
    v_xor_b32 v7, v5, v6
    v_lshl_add_u32 v10, v7, 4, v4
    v_add_u32 v6, 4, v6
    v_xor_b32 v7, v5, v6
    v_lshl_add_u32 v11, v7, 4, v4""")
    A("""s_mul_i32 s10, s3, 192
    s_lshl_b32 s11, s7, 1
    s_mov_b32 s12, 0x15555556""")
    for qq in range(3):
        A(f"""v_add_u32 v4, s10, v1
        v_add_u32 v4, {qq*64}, v4
        v_mul_hi_u32 v5, v4, s12
        v_mul_u32_u24 v6, 12, v5
        v_sub_u32 v6, v4, v6
        v_mul_lo_u32 v5, v5, s6
        v_lshl_add_u32 v5, v6, 4, v5
        v_add_u32 v{12+qq}, s11, v5""")
    A("""s_lshl_b32 s13, s3, 13
    v_lshrrev_b32 v4, 1, v2
    v_and_b32 v4, 7, v4
    v_lshlrev_b32 v5, 7, v2
    v_add_u32 v5, s13, v5""")
    for u in range(4):
        A(f"""v_add_u32 v6, {2*u}, v3
        v_xor_b32 v6, v6, v4
        v_lshl_add_u32 v{16+u}, v6, 4, v5""")
    for b in (1, 2):
        for u in range(4):
            A(f"v_add_u32 v{16+4*b+u}, {b*BUF}, v{16+u}")
    A("""v_bfe_u32 v4, v1, 2, 2
    v_lshl_add_u32 v4, v3, 3, v4
    v_mul_u32_u24 v4, 192, v4
    v_bfe_u32 v5, v1, 4, 1
    v_lshl_add_u32 v4, v5, 5, v4
    v_and_b32 v5, 3, v1
    v_lshl_add_u32 v4, v5, 3, v4""")
    for b in range(3):
        A(f"v_add_u32 v{28+b}, {32768 + b*BUF}, v4")
    A("""v_lshlrev_b32 v4, 3, v3
    v_add_u32 v4, s11, v4""")
    for t in range(3):
        for q in range(4):
            A(f"buffer_load_dwordx2 v[{32+t*8+q*2}:{32+t*8+q*2+1}], v4, s[48:51], 0 offen offset:{t*64+q*16}")
    A("""s_lshl_b32 s58, s5, 18
    s_lshl_b32 s59, s3, 16
    s_add_u32 s58, s58, s59
    s_lshl_b32 s60, s3, 13
    s_mul_i32 s61, s3, 3072
    s_add_u32 s61, s61, 32768
    s_lshl_b32 s62, s6, 6""")

    def dma(c, b):
        for q in range(8):
            A(f"""s_add_u32 m0, s60, {b*BUF + q*1024}
            s_add_u32 s63, s58, {q*8192 + c*128}
            buffer_load_dwordx4 v{10 + (q&1)}, s[36:39], s63 offen lds""")
        A(f"s_mul_i32 s63, s62, {c}")
        for qq in range(3):
            A(f"""s_add_u32 m0, s61, {b*BUF + qq*1024}
            s_nop 0
            buffer_load_dwordx4 v{12+qq}, s[40:43], s63 offen lds""")

    XF = 56
    WF = 72
    ACC = 96

    for t in range(6):
        for r in range(16):
            A(f"v_mov_b32 v{ACC+t*16+r}, 0")
    dma(0, 0)
    dma(1, 1)

    def reads(b, u, st):
        for mt in range(2):
            A(f"ds_read_b128 {vr(XF+st*8+mt*4,4)}, v{16+4*b+u} offset:{mt*4096}")
        for t in range(3):
            for rd in range(2):
                A(f"ds_read_b64_tr_b16 {vr(WF+st*12+t*4+rd*2,2)}, v{28+b} offset:{(16*u+4*rd)*192+64*t}")

    def mainloop(variant):
        for c in range(8):
            b = c % 3
            if c < 7:
                A("s_waitcnt vmcnt(11)")
            else:
                A("s_waitcnt vmcnt(0)")
            A("s_barrier")
            if c + 2 < 8:
                dma(c + 2, (c + 2) % 3)
            reads(b, 0, 0)
            for u in range(4):
                st = u & 1
                if u < 3:
                    reads(b, u + 1, st ^ 1)
                    A("s_waitcnt lgkmcnt(8)")
                else:
                    A("s_waitcnt lgkmcnt(0)")
                for mt in range(2):
                    for t in range(3):
                        acc = vr(ACC + (mt * 3 + t) * 16, 16)
                        xf = vr(XF + st * 8 + mt * 4, 4)
                        wf = vr(WF + st * 12 + t * 4, 4)
                        if variant[t] == "T":
                            A(f"v_mfma_f32_32x32x16_bf16 {acc}, {wf}, {xf}, {acc}")
                        else:
                            A(f"v_mfma_f32_32x32x16_bf16 {acc}, {xf}, {wf}, {acc}")
        A("s_nop 15")
        A("s_nop 3")

    A("""s_cmp_eq_u32 s4, 10
    s_cbranch_scc1 K1_TTN
    s_cmp_lt_u32 s4, 11
    s_cbranch_scc1 K1_TTT
    s_cmp_lt_u32 s4, 16
    s_cbranch_scc1 K1_NNN
    K1_TTT:""")
    mainloop("TTT")
    A("s_branch K1_EPI")
    A("K1_TTN:")
    mainloop("TTN")
    A("s_branch K1_EPI")
    A("K1_NNN:")
    mainloop("NNN")
    A("K1_EPI:")

    T = 192
    A(f"""v_lshlrev_b32 v4, 4, v1
    v_bfe_u32 v5, v1, 4, 1
    v_lshlrev_b32 v5, 16, v5
    v_lshl_add_u32 v5, v3, 8, v5
    v_and_b32 v6, 15, v1
    v_lshl_add_u32 v5, v6, 4, v5""")
    A("""s_lshl_b32 s64, s5, 3
    s_lshl_b32 s65, s3, 1
    s_add_u32 s64, s64, s65""")
    CQ = f2u(0.25 * LOG2E)
    for t in range(3):
        lq, lk, lv, lf, ln = (A.label("K1E") for _ in range(5))
        A(f"""s_add_u32 s66, s9, {t}
        s_cmp_ge_u32 s4, 16
        s_cbranch_scc1 {lf}
        s_and_b32 s67, s66, 15
        s_lshl_b32 s67, s67, 17
        s_cmp_lt_u32 s66, 16
        s_cbranch_scc1 {lq}
        s_cmp_lt_u32 s66, 32
        s_cbranch_scc1 {lk}
        {lv}:""")
        for mt in range(2):
            a = ACC + (mt * 3 + t) * 16
            for i in range(8):
                A(f"v_cvt_pk_bf16_f32 v{T+i}, v{a+2*i}, v{a+2*i+1}")
            A(f"""s_add_u32 s68, s64, {mt}
            s_lshl_b32 s68, s68, 10
            s_add_u32 s68, s68, s67
            s_add_u32 s68, s68, {WS_VT}
            buffer_store_dwordx4 {vr(T,4)}, v5, s[44:47], s68 offen
            buffer_store_dwordx4 {vr(T+4,4)}, v5, s[44:47], s68 offen offset:512
            s_nop 1""")
        A(f"s_branch {ln}")
        A(f"{lk}:")
        for mt in range(2):
            a = ACC + (mt * 3 + t) * 16
            for i in range(8):
                A(f"v_cvt_pk_bf16_f32 v{T+i}, v{a+2*i}, v{a+2*i+1}")
            A(f"""s_add_u32 s68, s64, {mt}
            s_lshl_b32 s68, s68, 10
            s_add_u32 s68, s68, s67
            s_add_u32 s68, s68, {WS_KB}
            s_add_u32 s69, s68, 65536
            buffer_store_dwordx4 {vr(T,4)}, v4, s[44:47], s68 offen
            buffer_store_dwordx4 {vr(T+4,4)}, v4, s[44:47], s69 offen
            s_nop 1""")
        A(f"s_branch {ln}")
        A(f"{lq}:")
        A(f"s_mov_b32 s70, 0x{CQ:08x}")
        for mt in range(2):
            a = ACC + (mt * 3 + t) * 16
            for i in range(8):
                x0, x1 = a + 2 * i, a + 2 * i + 1
                A(f"""v_cvt_pk_bf16_f32 v{T+i}, v{x0}, v{x1}
                v_lshlrev_b32 v{x0}, 16, v{T+i}
                v_and_b32 v{x1}, 0xffff0000, v{T+i}
                v_mul_f32 v{x0}, s70, v{x0}
                v_mul_f32 v{x1}, s70, v{x1}
                v_cvt_pk_bf16_f32 v{T+8+i}, v{x0}, v{x1}
                v_lshlrev_b32 v{T+24}, 16, v{T+8+i}
                v_and_b32 v{T+25}, 0xffff0000, v{T+8+i}
                v_sub_f32 v{x0}, v{x0}, v{T+24}
                v_sub_f32 v{x1}, v{x1}, v{T+25}
                v_cvt_pk_bf16_f32 v{T+16+i}, v{x0}, v{x1}""")
            A(f"""s_add_u32 s68, s64, {mt}
            s_lshl_b32 s68, s68, 10
            s_add_u32 s68, s68, s67
            s_add_u32 s69, s68, 65536
            buffer_store_dwordx4 {vr(T,4)}, v4, s[44:47], s68 offen
            buffer_store_dwordx4 {vr(T+4,4)}, v4, s[44:47], s69 offen
            s_add_u32 s68, s68, {WS_QH}
            s_add_u32 s69, s69, {WS_QH}
            buffer_store_dwordx4 {vr(T+8,4)}, v4, s[44:47], s68 offen
            buffer_store_dwordx4 {vr(T+12,4)}, v4, s[44:47], s69 offen
            s_add_u32 s68, s68, {WS_QL-WS_QH}
            s_add_u32 s69, s69, {WS_QL-WS_QH}
            buffer_store_dwordx4 {vr(T+16,4)}, v4, s[44:47], s68 offen
            buffer_store_dwordx4 {vr(T+20,4)}, v4, s[44:47], s69 offen
            s_nop 1""")
        A(f"s_branch {ln}")
        A(f"""{lf}:
        s_cmp_ge_u32 s66, 43
        s_cbranch_scc1 {ln}
        s_mov_b32 s70, 0x{f2u(LOG2E):08x}
        s_mov_b32 s71, 0x41a00000""")
        for mt in range(2):
            a = ACC + (mt * 3 + t) * 16
            for i in range(8):
                x0, x1 = a + 2 * i, a + 2 * i + 1
                bq = 32 + t * 8 + (i >> 1) * 2 + (i & 1)
                p = T + 24
                bf16_round_pair(A, x0, x1, p)
                A(f"""v_lshlrev_b32 v{p+1}, 16, v{bq}
                v_and_b32 v{p+2}, 0xffff0000, v{bq}
                v_add_f32 v{x0}, v{x0}, v{p+1}
                v_add_f32 v{x1}, v{x1}, v{p+2}""")
                bf16_round_pair(A, x0, x1, p)
                A(f"""v_min_f32 v{p+1}, s71, v{x0}
                v_min_f32 v{p+2}, s71, v{x1}
                v_mul_f32 v{p+1}, s70, v{p+1}
                v_mul_f32 v{p+2}, s70, v{p+2}
                v_exp_f32 v{p+1}, v{p+1}
                v_exp_f32 v{p+2}, v{p+2}
                s_nop 0
                v_add_f32 v{p+3}, 2.0, v{p+1}
                v_add_f32 v{p+4}, 2.0, v{p+2}
                v_mul_f32 v{p+1}, v{p+1}, v{p+3}
                v_mul_f32 v{p+2}, v{p+2}, v{p+4}
                v_add_f32 v{p+3}, 2.0, v{p+1}
                v_add_f32 v{p+4}, 2.0, v{p+2}
                v_rcp_f32 v{p+3}, v{p+3}
                v_rcp_f32 v{p+4}, v{p+4}
                v_mul_f32 v{x0}, v{x0}, v{p+1}
                v_mul_f32 v{x1}, v{x1}, v{p+2}
                v_mul_f32 v{x0}, v{x0}, v{p+3}
                v_mul_f32 v{x1}, v{x1}, v{p+4}
                v_cvt_pk_bf16_f32 v{T+i}, v{x0}, v{x1}""")
            A(f"""s_add_u32 s68, s64, {mt}
            s_mul_i32 s68, s68, 43
            s_add_u32 s68, s68, s66
            s_lshl_b32 s68, s68, 11
            s_add_u32 s68, s68, {WS_ACT}
            buffer_store_dwordx4 {vr(T,4)}, v4, s[44:47], s68 offen
            buffer_store_dwordx4 {vr(T+4,4)}, v4, s[44:47], s68 offen offset:1024
            s_nop 1""")
        A(f"{ln}:")
    A("s_branch K1_END")

    A("K1_GATE:")
    srd(A, 48, 30, 31, 1024)
    A("""v_and_b32 v2, 7, v1
    v_lshrrev_b32 v3, 3, v1
    v_lshlrev_b32 v4, 7, v2""")
    for q in range(8):
        A(f"buffer_load_dwordx4 {vr(32+4*q,4)}, v4, s[48:51], 0 offen offset:{q*16}")
    A("""v_lshl_add_u32 v5, v3, 10, v4
    s_lshl_b32 s58, s5, 18
    s_lshl_b32 s59, s3, 16
    s_add_u32 s58, s58, s59
    s_waitcnt vmcnt(0)""")
    for d in range(32):
        A(f"""v_lshlrev_b32 v{64+2*d}, 16, v{32+d}
        v_and_b32 v{65+2*d}, 0xffff0000, v{32+d}""")
    A(f"""s_lshl_b32 s60, s5, 10
    s_lshl_b32 s61, s3, 8
    s_add_u32 s60, s60, s61
    s_add_u32 s60, s60, {WS_G}
    v_lshlrev_b32 v6, 2, v3
    s_mov_b32 s62, 0
    s_mov_b32 s70, 0x{f2u(-LOG2E):08x}
    K1_GLOOP:""")
    for q in range(8):
        A(f"buffer_load_dwordx4 {vr(128+4*q,4)}, v5, s[36:39], s58 offen offset:{q*16}")
    A("""v_mov_b32 v8, 0
    v_mov_b32 v9, 0
    s_waitcnt vmcnt(0)""")
    for d in range(32):
        A(f"""v_lshlrev_b32 v10, 16, v{128+d}
        v_and_b32 v11, 0xffff0000, v{128+d}
        v_mul_f32 v10, v10, v{64+2*d}
        v_mul_f32 v11, v11, v{65+2*d}
        v_cvt_pk_bf16_f32 v12, v10, v11
        v_lshlrev_b32 v10, 16, v12
        v_and_b32 v11, 0xffff0000, v12
        v_add_f32 v8, v8, v10
        v_add_f32 v9, v9, v11""")
    A("""v_add_f32 v8, v8, v9
    s_nop 1
    v_add_f32_dpp v8, v8, v8 quad_perm:[1,0,3,2] row_mask:0xf bank_mask:0xf
    s_nop 1
    v_add_f32_dpp v8, v8, v8 quad_perm:[2,3,0,1] row_mask:0xf bank_mask:0xf
    s_nop 1
    v_add_f32_dpp v8, v8, v8 row_half_mirror row_mask:0xf bank_mask:0xf
    s_nop 1
    v_cvt_pk_bf16_f32 v9, v8, v8
    v_lshlrev_b32 v8, 16, v9
    v_mul_f32 v8, s70, v8
    v_exp_f32 v8, v8
    s_nop 0
    v_add_f32 v8, 1.0, v8
    v_rcp_f32 v8, v8
    s_nop 0
    v_cvt_pk_bf16_f32 v9, v8, v8
    v_lshlrev_b32 v8, 16, v9
    buffer_store_dword v8, v6, s[44:47], s60 offen
    s_add_u32 s58, s58, 8192
    s_add_u32 s60, s60, 32
    s_add_u32 s62, s62, 1
    s_cmp_lt_u32 s62, 8
    s_cbranch_scc1 K1_GLOOP
    K1_END:
    s_endpgm""")


def gen_k2(A):
    QB, QH, QL = 8, 12, 16
    KF = 20
    VF = 36
    P = 52
    NEGM = 60
    SA, SB = 76, 92
    O = 108
    A("k2_kernel:")
    A("""s_cmp_ge_u32 s2, 256
    s_cbranch_scc1 K2_END
    s_load_dwordx2 s[32:33], s[0:1], 80
    v_lshrrev_b32 v2, 6, v0
    v_and_b32 v1, 63, v0
    s_nop 0
    v_readfirstlane_b32 s3, v2
    s_and_b32 s4, s2, 7
    s_lshl_b32 s4, s4, 2
    s_bfe_u32 s5, s2, 0x20003
    s_add_u32 s4, s4, s5
    s_lshr_b32 s5, s2, 5
    s_waitcnt lgkmcnt(0)""")
    srd(A, 44, 32, 33, WS_SIZE)
    A(f"""v_lshlrev_b32 v2, 4, v1
    s_lshl_b32 s6, s4, 16
    s_lshl_b32 s7, s3, 13
    s_add_u32 s8, s6, s7
    s_add_u32 s9, s8, {WS_KB}
    s_add_u32 s10, s8, {WS_VT}""")
    for q in range(8):
        A(f"""s_add_u32 m0, s7, {q*1024}
        s_add_u32 s11, s9, {q*1024}
        buffer_load_dwordx4 v2, s[44:47], s11 offen lds
        s_add_u32 m0, s7, {65536+q*1024}
        s_add_u32 s11, s10, {q*1024}
        buffer_load_dwordx4 v2, s[44:47], s11 offen lds""")
    A(f"""s_lshl_b32 s12, s5, 3
    s_add_u32 s12, s12, s3
    s_lshl_b32 s13, s12, 10
    s_add_u32 s13, s13, s6
    s_add_u32 s14, s13, {WS_QH}
    s_add_u32 s15, s13, {WS_QL}
    buffer_load_dwordx4 {vr(QB,4)}, v2, s[44:47], s13 offen
    buffer_load_dwordx4 {vr(QH,4)}, v2, s[44:47], s14 offen
    buffer_load_dwordx4 {vr(QL,4)}, v2, s[44:47], s15 offen""")
    A("""v_mov_b32 v4, 0x3f803f80
    v_mov_b32 v5, 0
    v_and_b32 v6, 3, v1
    v_lshlrev_b32 v6, 2, v6
    v_add_u32 v6, 0x20000, v6
    ds_write_b32 v6, v4
    ds_write_b32 v6, v5 offset:16""")
    A("""v_and_b32 v3, 31, v1
    v_lshrrev_b32 v4, 5, v1
    v_lshlrev_b32 v5, 4, v3
    v_lshl_add_u32 v5, v4, 8, v5
    v_add_u32 v5, 0x10000, v5
    v_add_u32 v6, 512, v5
    v_mov_b32 v7, 0x400
    v_and_b32 v124, 0x1b, v3
    v_mov_b32 v125, 0x20010
    v_mov_b32 v126, 0x20000
    v_cmp_eq_u32 vcc, 16, v124
    s_nop 1
    v_cndmask_b32 v125, v125, v126, vcc
    v_cmp_gt_u32 vcc, 16, v3
    s_nop 1
    v_cndmask_b32 v3, v125, v5, vcc
    v_cndmask_b32 v4, v125, v6, vcc
    v_cndmask_b32 v5, 0, v7, vcc""")
    for r in range(16):
        A(f"v_mov_b32 v{O+r}, 0")
    A("""v_mov_b32 v124, 0xff800000
    v_mov_b32 v125, 0xff800000
    s_waitcnt vmcnt(0) lgkmcnt(0)
    s_barrier""")
    S = [SA, SB]
    A(f"""v_mov_b32 v6, v2
    ds_read_b128 {vr(KF,4)}, v6
    ds_read_b128 {vr(KF+4,4)}, v6 offset:1024
    s_waitcnt lgkmcnt(1)
    v_mfma_f32_32x32x16_bf16 {vr(SA,16)}, {vr(KF,4)}, {vr(QB,4)}, 0
    s_nop 7
    s_mov_b32 s20, 0
    K2_P1:""")
    for t in range(4):
        X, Y = S[t & 1], S[(t + 1) & 1]
        A(f"""ds_read_b128 {vr(KF+((t+2)%4)*4,4)}, v6 offset:{(t+2)*1024}
        s_waitcnt lgkmcnt(1)
        v_mfma_f32_32x32x16_bf16 {vr(Y,16)}, {vr(KF+((t+1)%4)*4,4)}, {vr(QB,4)}, 0
        s_nop 3""")
        for i in range(4):
            A(f"""v_max3_f32 v124, v124, v{X+4*i}, v{X+4*i+1}
            v_max3_f32 v125, v125, v{X+4*i+2}, v{X+4*i+3}""")
    A("""v_add_u32 v6, 0x1000, v6
    s_add_u32 s20, s20, 1
    s_cmp_lt_u32 s20, 16
    s_cbranch_scc1 K2_P1
    v_max_f32 v124, v124, v125
    s_nop 1
    v_mov_b32 v125, v124
    s_nop 1
    v_permlane32_swap_b32 v124, v125
    s_nop 1
    v_max_f32 v124, v124, v125""")
    A(f"v_mul_f32 v124, 0x{f2u(-0.25*LOG2E):08x}, v124")
    for r in range(16):
        A(f"v_mov_b32 v{NEGM+r}, v124")
    A("s_waitcnt lgkmcnt(0)")
    A("s_nop 7")
    A(f"""v_mov_b32 v6, v2
    ds_read_b128 {vr(KF,4)}, v6
    ds_read_b128 {vr(KF+4,4)}, v6 offset:1024
    ds_read_b128 {vr(VF,4)}, v3
    ds_read_b128 {vr(VF+4,4)}, v4
    v_add_u32 v3, v3, v5
    v_add_u32 v4, v4, v5
    s_waitcnt lgkmcnt(3)
    v_mfma_f32_32x32x16_bf16 {vr(SA,16)}, {vr(KF,4)}, {vr(QH,4)}, {vr(NEGM,16)}
    v_mfma_f32_32x32x16_bf16 {vr(SA,16)}, {vr(KF,4)}, {vr(QL,4)}, {vr(SA,16)}
    s_nop 7
    s_mov_b32 s20, 0
    K2_P2:""")
    for t in range(4):
        X, Y = S[t & 1], S[(t + 1) & 1]
        vcur, vnxt = VF + (t & 1) * 8, VF + ((t + 1) & 1) * 8
        A(f"""ds_read_b128 {vr(KF+((t+2)%4)*4,4)}, v6 offset:{(t+2)*1024}
        ds_read_b128 {vr(vnxt,4)}, v3
        ds_read_b128 {vr(vnxt+4,4)}, v4
        v_add_u32 v3, v3, v5
        v_add_u32 v4, v4, v5
        s_waitcnt lgkmcnt(5)
        v_mfma_f32_32x32x16_bf16 {vr(Y,16)}, {vr(KF+((t+1)%4)*4,4)}, {vr(QH,4)}, {vr(NEGM,16)}
        v_mfma_f32_32x32x16_bf16 {vr(Y,16)}, {vr(KF+((t+1)%4)*4,4)}, {vr(QL,4)}, {vr(Y,16)}""")
        for r in range(16):
            A(f"v_exp_f32 v{X+r}, v{X+r}")
        for i in range(8):
            A(f"v_cvt_pk_bf16_f32 v{P+i}, v{X+2*i}, v{X+2*i+1}")
        A(f"""s_waitcnt lgkmcnt(3)
        s_nop 0
        v_mfma_f32_32x32x16_bf16 {vr(O,16)}, {vr(vcur,4)}, {vr(P,4)}, {vr(O,16)}
        v_mfma_f32_32x32x16_bf16 {vr(O,16)}, {vr(vcur+4,4)}, {vr(P+4,4)}, {vr(O,16)}""")
    A("""v_add_u32 v6, 0x1000, v6
    s_add_u32 s20, s20, 1
    s_cmp_lt_u32 s20, 16
    s_cbranch_scc1 K2_P2
    s_nop 15
    s_nop 3""")
    A(f"""v_rcp_f32 v124, v{O+8}
    s_nop 0""")
    for r in range(8):
        A(f"v_mul_f32 v{O+r}, v{O+r}, v124")
    for i in range(4):
        A(f"v_cvt_pk_bf16_f32 v{P+i}, v{O+2*i}, v{O+2*i+1}")
    A(f"""s_lshl_b32 s13, s12, 5
    s_add_u32 s13, s13, s4
    s_lshl_b32 s13, s13, 10
    s_add_u32 s13, s13, {WS_OB}
    buffer_store_dwordx4 {vr(P,4)}, v2, s[44:47], s13 offen
    s_waitcnt lgkmcnt(0)
    K2_END:
    s_endpgm""")


def gen_k3(A):
    BF = 16
    AF = 80
    ACC = 96
    T = 160
    A("k3_kernel:")
    A("""s_cmp_ge_u32 s2, 256
    s_cbranch_scc1 K3_END
    s_load_dwordx16 s[16:31], s[0:1], 0
    s_load_dwordx2 s[32:33], s[0:1], 80
    s_load_dwordx2 s[34:35], s[0:1], 64
    v_lshrrev_b32 v2, 6, v0
    v_and_b32 v1, 63, v0
    s_nop 0
    v_readfirstlane_b32 s3, v2
    s_lshr_b32 s4, s2, 3
    s_and_b32 s5, s2, 7
    s_waitcnt lgkmcnt(0)""")
    srd(A, 44, 32, 33, WS_SIZE)
    srd(A, 48, 34, 35, 2048 * 512 * 2)
    A("""s_mov_b32 s42, %d
    s_cmp_eq_u32 s3, 0
    s_cselect_b32 s40, s20, s28
    s_cselect_b32 s41, s21, s29
    s_cselect_b32 s42, %d, s42
    s_and_b32 s41, s41, 0xffff
    s_mov_b32 s43, 0x20000""" % (1376 * 512 * 2, 512 * 512 * 2))
    A("""s_mov_b32 s6, 0
    s_mov_b32 s7, 16
    s_cmp_eq_u32 s3, 1
    s_cselect_b32 s7, 15, s7
    s_cmp_eq_u32 s3, 2
    s_cselect_b32 s6, 15, s6
    s_cselect_b32 s7, 14, s7
    s_cmp_eq_u32 s3, 3
    s_cselect_b32 s6, 29, s6
    s_cselect_b32 s7, 14, s7""")
    A(f"""s_lshl_b32 s8, s4, 1
    s_mov_b32 s12, {WS_ACT}
    s_cmp_eq_u32 s3, 0
    s_cselect_b32 s9, 32, 86
    s_cselect_b32 s12, {WS_OB}, s12
    s_mul_i32 s10, s8, s9
    s_lshl_b32 s13, s6, 1
    s_add_u32 s10, s10, s13
    s_lshl_b32 s10, s10, 10
    s_add_u32 s10, s10, s12
    s_lshl_b32 s9, s9, 10
    s_add_u32 s11, s10, s9""")
    A("""s_lshl_b32 s14, s6, 15
    s_lshl_b32 s15, s3, 14""")
    A("""v_lshrrev_b32 v4, 3, v1
    v_lshlrev_b32 v4, 10, v4
    v_bfe_u32 v5, v1, 4, 1
    v_lshlrev_b32 v5, 2, v5
    v_and_b32 v6, 7, v1
    v_xor_b32 v5, v5, v6
    v_lshl_add_u32 v4, v5, 4, v4
    s_lshl_b32 s9, s5, 7
    v_add_u32 v2, s9, v4""")
    A("""v_bfe_u32 v5, v1, 2, 2
    v_lshrrev_b32 v6, 5, v1
    v_lshl_add_u32 v6, v6, 2, v5
    v_lshlrev_b32 v6, 7, v6
    v_add_u32 v6, s15, v6
    v_bfe_u32 v7, v1, 0, 1
    v_lshl_add_u32 v6, v7, 5, v6
    v_bfe_u32 v7, v1, 4, 1
    v_lshl_add_u32 v6, v7, 4, v6
    v_bfe_u32 v7, v1, 1, 1
    v_lshl_add_u32 v6, v7, 3, v6
    v_bfe_u32 v7, v1, 3, 1
    v_lshl_add_u32 v3, v7, 6, v6
    v_xor_b32 v7, 1, v7
    v_lshl_add_u32 v4, v7, 6, v6
    v_lshlrev_b32 v5, 4, v1""")
    for i in range(64):
        A(f"v_mov_b32 v{ACC+i}, 0")

    def issue(stg):
        for q in range(4):
            A(f"""s_add_u32 m0, s15, {stg*4096 + q*1024}
            s_add_u32 s52, s14, {q*8192}
            buffer_load_dwordx4 v2, s[40:43], s52 offen lds""")
        for st in range(2):
            for u in range(2):
                A(f"buffer_load_dwordx4 {vr(BF+stg*16+(u*2+st)*4,4)}, v5, s[44:47], s{10+st} offen offset:{u*1024}")
        A("""s_add_u32 s14, s14, 32768
        s_add_u32 s10, s10, 2048
        s_add_u32 s11, s11, 2048""")

    for stg in range(3):
        issue(stg)
    A("s_mov_b32 s53, 0")
    A("K3_LOOP:")
    for stg in range(4):
        issue((stg + 3) % 4)
        A("s_waitcnt vmcnt(24)")
        for u in range(2):
            for nt in range(2):
                for rd in range(2):
                    A(f"ds_read_b64_tr_b16 {vr(AF+(u*2+nt)*4+rd*2,2)}, v{3+nt} offset:{stg*4096+(16*u+8*rd)*128}")
        for u in range(2):
            A(f"s_waitcnt lgkmcnt({4 if u == 0 else 0})")
            for nt in range(2):
                for st in range(2):
                    acc = vr(ACC + (nt * 2 + st) * 16, 16)
                    A(f"v_mfma_f32_32x32x16_bf16 {acc}, {vr(AF+(u*2+nt)*4,4)}, {vr(BF+stg*16+(u*2+st)*4,4)}, {acc}")
        A("""s_add_u32 s53, s53, 1
        s_cmp_ge_u32 s53, s7
        s_cbranch_scc1 K3_DONE""")
    A("s_branch K3_LOOP")
    A("""K3_DONE:
    s_waitcnt vmcnt(0)
    s_nop 15
    s_nop 3""")
    A("""v_lshlrev_b32 v6, 4, v1
    v_add_u32 v6, s15, v6""")
    for tl in range(4):
        for q in range(4):
            A(f"ds_write_b128 v6, {vr(ACC+tl*16+q*4,4)} offset:{tl*4096+q*1024}")
    A(f"""s_and_b32 s8, s3, 1
    s_lshr_b32 s9, s3, 1
    s_lshl_b32 s10, s4, 6
    s_lshl_b32 s11, s8, 5
    s_add_u32 s10, s10, s11
    v_and_b32 v7, 31, v1
    v_add_u32 v7, s10, v7
    v_lshlrev_b32 v8, 2, v7
    s_mov_b32 s12, {WS_G}
    buffer_load_dword v9, v8, s[44:47], s12 offen
    s_waitcnt lgkmcnt(0)
    s_barrier
    s_lshl_b32 s13, s3, 12
    v_lshlrev_b32 v6, 4, v1
    v_add_u32 v6, s13, v6""")
    for w in range(4):
        for q in range(4):
            A(f"ds_read_b128 {vr(ACC+w*16+q*4,4)}, v6 offset:{w*16384+q*1024}")
    A("""v_lshlrev_b32 v8, 10, v7
    v_lshrrev_b32 v10, 5, v1
    v_lshl_add_u32 v8, v10, 5, v8
    s_lshl_b32 s14, s5, 7
    s_lshl_b32 s15, s9, 6
    s_add_u32 s14, s14, s15
    s_waitcnt vmcnt(0) lgkmcnt(0)
    v_sub_f32 v10, 1.0, v9
    v_cvt_pk_bf16_f32 v11, v10, v10
    v_lshlrev_b32 v10, 16, v11""")
    for i in range(8):
        a0, a1 = ACC + 2 * i, ACC + 2 * i + 1
        b0, b1 = ACC + 16 + 2 * i, ACC + 16 + 2 * i + 1
        A(f"""v_add_f32 v{b0}, v{b0}, v{b0+16}
        v_add_f32 v{b1}, v{b1}, v{b1+16}
        v_add_f32 v{b0}, v{b0}, v{b0+32}
        v_add_f32 v{b1}, v{b1}, v{b1+32}""")
        bf16_round_pair(A, a0, a1, T + 16)
        bf16_round_pair(A, b0, b1, T + 17)
        A(f"""v_mul_f32 v{a0}, v{a0}, v9
        v_mul_f32 v{a1}, v{a1}, v9
        v_mul_f32 v{b0}, v{b0}, v10
        v_mul_f32 v{b1}, v{b1}, v10""")
        bf16_round_pair(A, a0, a1, T + 16)
        bf16_round_pair(A, b0, b1, T + 17)
        A(f"""v_add_f32 v{a0}, v{a0}, v{b0}
        v_add_f32 v{a1}, v{a1}, v{b1}
        v_cvt_pk_bf16_f32 v{T+i}, v{a0}, v{a1}""")
    A(f"""buffer_store_dwordx4 {vr(T,4)}, v8, s[48:51], s14 offen
    buffer_store_dwordx4 {vr(T+4,4)}, v8, s[48:51], s14 offen offset:16
    K3_END:
    s_endpgm""")


HEADER = """; Kernarg layout for this problem (88 bytes, ptrs only, base s[0:1]):
; @launch kernel=k1_kernel grid=(256,1,1) block=(256,1,1) lds=135168
; @launch kernel=k2_kernel grid=(256,1,1) block=(512,1,1) lds=131136
; @launch kernel=k3_kernel grid=(256,1,1) block=(256,1,1) lds=65536
.amdgcn_target "amdgcn-amd-amdhsa--gfx950"
.text
"""


def kd(name, vgpr, sgpr=102):
    acc = (vgpr + 3) // 4 * 4
    return f""".amdhsa_kernel {name}
  .amdhsa_next_free_vgpr {vgpr}
  .amdhsa_next_free_sgpr {sgpr}
  .amdhsa_accum_offset {acc}
  .amdhsa_group_segment_fixed_size 0
  .amdhsa_kernarg_size 88
  .amdhsa_user_sgpr_count 2
  .amdhsa_user_sgpr_kernarg_segment_ptr 1
  .amdhsa_system_sgpr_workgroup_id_x 1
.end_amdhsa_kernel
"""


def main():
    out = HEADER
    for nm, fn in (("k1_kernel", gen_k1), ("k2_kernel", gen_k2), ("k3_kernel", gen_k3)):
        A = Asm()
        A.lab = {"k1_kernel": 1000, "k2_kernel": 2000, "k3_kernel": 3000}[nm]
        fn(A)
        out += f".globl {nm}\n.p2align 8\n.type {nm},@function\n" + A.text()
    out += '.section .rodata,"a"\n'
    for nm, v in (("k1_kernel", 224), ("k2_kernel", 128), ("k3_kernel", 184)):
        out += ".p2align 6\n" + kd(nm, v)
    path = sys.argv[1] if len(sys.argv) > 1 else f"cdna_kernels/{NAME}.s"
    open(path, "w").write(out)


if __name__ == "__main__":
    main()
```

```python
import sys, struct, os
FL = set(os.environ.get("FL", "").split(","))
STFLAG = os.environ.get("STFLAG", "")

NAME = "gated_mix__mha_block__dense_activation_mish__prompt"

WS_QB = 0x000000
WS_QH = 0x200000
WS_QL = 0x400000
WS_KB = 0x600000
WS_VT = 0x800000
WS_ACT = 0xA00000
WS_OB = 0x1000000
WS_G = 0x1200000
WS_KN = 0x1210000
WS_PART = 0x1400000
WS_SIZE = 0x2800000

LOG2E = 1.4426950408889634


def f2u(x):
    return struct.unpack("<I", struct.pack("<f", x))[0]


class Asm:
    def __init__(self):
        self.lines = []
        self.lab = 0

    def __call__(self, s):
        for l in s.strip("\n").split("\n"):
            l = l.strip()
            if l:
                if "offset:" in l:
                    off = int(l.split("offset:")[1].split()[0], 0)
                    assert off < (4096 if l.startswith("buffer") else 65536), l
                if l.startswith("buffer_store") and STFLAG:
                    l = l + " " + STFLAG
                self.lines.append("    " + l if not l.endswith(":") else l)

    def label(self, p="L"):
        self.lab += 1
        return f"{p}_{self.lab}"

    def text(self):
        return "\n".join(self.lines) + "\n"


def vr(a, n):
    return f"v[{a}:{a+n-1}]"


def srd(A, d, lo, hi, size):
    A(f"""s_mov_b32 s{d}, s{lo}
    s_and_b32 s{d+1}, s{hi}, 0xffff
    s_mov_b32 s{d+2}, {size}
    s_mov_b32 s{d+3}, 0x20000""")


STAMP_BASE = 0x2400000


def stamp(A, kern, idx):
    if "stamp" not in FL:
        return
    r = 166 if kern == 1 else 254
    A(f"""s_memtime s[92:93]
    s_lshl_b32 s94, s2, 4
    s_add_u32 s94, s94, s3
    s_lshl_b32 s94, s94, 6
    s_add_u32 s94, s94, {STAMP_BASE + kern*0x40000 + idx*4}
    s_waitcnt lgkmcnt(0)
    v_mov_b32 v{r+1}, s92
    v_mov_b32 v{r}, 0
    buffer_store_dword v{r+1}, v{r}, s[44:47], s94 offen
    s_memrealtime s[92:93]
    s_waitcnt lgkmcnt(0)
    v_mov_b32 v{r+1}, s92
    s_add_u32 s94, s94, 0x100000
    buffer_store_dword v{r+1}, v{r}, s[44:47], s94 offen""")


def bf16_round_pair(A, a, b, tmp):
    A(f"""v_cvt_pk_bf16_f32 v{tmp}, v{a}, v{b}
    v_lshlrev_b32 v{a}, 16, v{tmp}
    v_and_b32 v{b}, 0xffff0000, v{tmp}""")


def gen_k1(A):
    BUF = 45056
    A("k1_kernel:")
    A("""s_cmp_ge_u32 s2, 256
    s_cbranch_scc1 K1_END
    s_load_dwordx16 s[16:31], s[0:1], 0
    s_load_dwordx2 s[32:33], s[0:1], 80
    v_lshrrev_b32 v2, 6, v0
    v_and_b32 v1, 63, v0
    s_nop 0
    v_readfirstlane_b32 s3, v2
    s_lshr_b32 s4, s2, 3
    s_and_b32 s5, s2, 7
    s_waitcnt lgkmcnt(0)""")
    srd(A, 36, 16, 17, 2048 * 512 * 2)
    srd(A, 44, 32, 33, WS_SIZE)
    stamp(A, 0, 0)
    A("""s_cmp_ge_u32 s2, 248
    s_cbranch_scc1 %s""" % ("K1_END" if "nogate" in FL else "K1_GATE"))
    srd(A, 48, 26, 27, 1376 * 2)
    A("""s_mov_b32 s42, %d
    s_mov_b32 s6, 2752
    s_cmp_lt_u32 s4, 16
    s_cselect_b32 s40, s18, s24
    s_cselect_b32 s41, s19, s25
    s_cselect_b32 s42, %d, s42
    s_mov_b32 s43, 0x20000
    s_cselect_b32 s6, 3072, s6
    s_cselect_b32 s8, 0, 16
    s_and_b32 s41, s41, 0xffff
    s_sub_u32 s8, s4, s8
    s_mul_i32 s7, s8, 96
    s_mul_i32 s9, s8, 3""" % (512 * 1376 * 2, 512 * 1536 * 2))
    A("""v_and_b32 v2, 31, v1
    v_lshrrev_b32 v3, 5, v1""")
    A("""v_lshrrev_b32 v4, 3, v1
    v_lshlrev_b32 v4, 10, v4
    v_and_b32 v5, 7, v1
    v_lshrrev_b32 v6, 4, v1
    v_xor_b32 v7, v5, v6
    v_lshl_add_u32 v10, v7, 4, v4
    v_add_u32 v6, 4, v6
    v_xor_b32 v7, v5, v6
    v_lshl_add_u32 v11, v7, 4, v4""")
    A("""s_add_u32 s10, s3, 8
    s_cmp_lt_u32 s3, 4
    s_cselect_b32 s10, s10, s3
    s_lshl_b32 s11, s7, 1
    s_mov_b32 s12, 0x15555556
    s_lshl_b32 s13, s3, 6
    s_lshl_b32 s14, s10, 6""")
    for qq in range(2):
        A(f"""v_add_u32 v4, s{13+qq}, v1
        v_mul_hi_u32 v5, v4, s12
        v_mul_u32_u24 v6, 12, v5
        v_sub_u32 v6, v4, v6
        v_mul_lo_u32 v5, v5, s6
        v_lshl_add_u32 v5, v6, 4, v5
        v_add_u32 v{12+qq}, s11, v5""")
    A("""s_lshl_b32 s58, s5, 18
    s_lshl_b32 s59, s3, 15
    s_add_u32 s58, s58, s59
    s_lshl_b32 s60, s3, 12
    s_lshl_b32 s61, s3, 10
    s_add_u32 s61, s61, 32768
    s_lshl_b32 s57, s10, 10
    s_add_u32 s57, s57, 32768
    s_lshl_b32 s62, s6, 6""")

    def dma(c, b):
        for q in range(4):
            A(f"""s_add_u32 m0, s60, {b*BUF + q*1024}
            s_add_u32 s63, s58, {q*8192 + c*128}
            buffer_load_dwordx4 v{10 + (q&1)}, s[36:39], s63 offen lds""")
        A(f"s_mul_i32 s63, s62, {c}")
        for qq in range(2):
            A(f"""s_add_u32 m0, s{61 if qq == 0 else 57}, {b*BUF}
            s_nop 0
            buffer_load_dwordx4 v{12+qq}, s[40:43], s63 offen lds""")

    dma(0, 0)
    dma(1, 1)
    A("""v_lshlrev_b32 v4, 3, v3
    v_add_u32 v4, s11, v4""")
    for t in range(3):
        for q in range(4):
            A(f"buffer_load_dwordx2 v[{32+t*8+q*2}:{32+t*8+q*2+1}], v4, s[48:51], 0 offen offset:{t*64+q*16}")
    A("""v_lshrrev_b32 v4, 1, v2
    v_and_b32 v4, 7, v4
    v_lshlrev_b32 v5, 7, v2
    v_add_u32 v5, s60, v5""")
    for u in range(4):
        A(f"""v_add_u32 v6, {2*u}, v3
        v_xor_b32 v6, v6, v4
        v_lshl_add_u32 v{16+u}, v6, 4, v5""")
    for b in (1, 2):
        for u in range(4):
            A(f"v_add_u32 v{16+4*b+u}, {b*BUF}, v{16+u}")
    A("""v_bfe_u32 v4, v1, 2, 2
    v_lshl_add_u32 v4, v3, 3, v4
    v_mul_u32_u24 v4, 192, v4
    v_bfe_u32 v5, v1, 4, 1
    v_lshl_add_u32 v4, v5, 5, v4
    v_and_b32 v5, 3, v1
    v_lshl_add_u32 v4, v5, 3, v4""")
    for b in range(3):
        A(f"v_add_u32 v{28+b}, {32768 + b*BUF}, v4")

    XF = 56
    WF = 64
    ACC = 88
    T = 136
    for i in range(48):
        A(f"v_mov_b32 v{ACC+i}, 0")

    def reads(b, u, st):
        A(f"ds_read_b128 {vr(XF+st*4,4)}, v{16+4*b+u}")
        for t in range(3):
            for rd in range(2):
                A(f"ds_read_b64_tr_b16 {vr(WF+st*12+t*4+rd*2,2)}, v{28+b} offset:{(16*u+4*rd)*192+64*t}")

    def mainloop(variant):
        for c in range(8):
            b = c % 3
            if c == 0:
                A("s_waitcnt vmcnt(18)")
            elif c < 7:
                A("s_waitcnt vmcnt(6)")
            else:
                A("s_waitcnt vmcnt(0)")
            A("s_barrier")
            stamp(A, 0, 1 + c)
            reads(b, 0, 0)
            if c + 2 < 8:
                dma(c + 2, (c + 2) % 3)
            for u in range(4):
                st = u & 1
                if u < 3:
                    reads(b, u + 1, st ^ 1)
                    A("s_waitcnt lgkmcnt(7)")
                else:
                    A("s_waitcnt lgkmcnt(0)")
                for t in range(3):
                    acc = vr(ACC + t * 16, 16)
                    xf = vr(XF + st * 4, 4)
                    wf = vr(WF + st * 12 + t * 4, 4)
                    if variant[t] == "T":
                        A(f"v_mfma_f32_32x32x16_bf16 {acc}, {wf}, {xf}, {acc}")
                    else:
                        A(f"v_mfma_f32_32x32x16_bf16 {acc}, {xf}, {wf}, {acc}")
        A("s_nop 15")
        A("s_nop 3")

    A("""s_cmp_eq_u32 s4, 10
    s_cbranch_scc1 K1_TTN
    s_cmp_lt_u32 s4, 11
    s_cbranch_scc1 K1_TTT
    s_cmp_lt_u32 s4, 16
    s_cbranch_scc1 K1_NNN
    K1_TTT:""")
    mainloop("TTT")
    A("s_branch K1_EPI")
    A("K1_TTN:")
    mainloop("TTN")
    A("s_branch K1_EPI")
    A("K1_NNN:")
    mainloop("NNN")
    A("K1_EPI:")
    stamp(A, 0, 9)

    A(f"""v_lshlrev_b32 v4, 4, v1
    v_bfe_u32 v5, v1, 4, 1
    v_lshlrev_b32 v5, 16, v5
    v_lshl_add_u32 v5, v3, 8, v5
    v_and_b32 v6, 15, v1
    v_lshl_add_u32 v5, v6, 4, v5""")
    A("""s_lshl_b32 s64, s5, 3
    s_add_u32 s64, s64, s3
    s_lshl_b32 s65, s64, 10""")
    CQ = f2u(0.25 * LOG2E)
    for t in range(3):
        lq, lk, lv, lf, ln = (A.label("K1E") for _ in range(5))
        a = ACC + t * 16
        A(f"""s_add_u32 s66, s9, {t}
        s_cmp_ge_u32 s4, 16
        s_cbranch_scc1 {lf}
        s_and_b32 s67, s66, 15
        s_lshl_b32 s67, s67, 17
        s_add_u32 s68, s65, s67
        s_cmp_lt_u32 s66, 16
        s_cbranch_scc1 {lq}
        s_cmp_lt_u32 s66, 32
        s_cbranch_scc1 {lk}
        {lv}:""")
        for i in range(8):
            A(f"v_cvt_pk_bf16_f32 v{T+i}, v{a+2*i}, v{a+2*i+1}")
        A(f"""s_add_u32 s68, s68, {WS_VT}
        buffer_store_dwordx4 {vr(T,4)}, v5, s[44:47], s68 offen
        buffer_store_dwordx4 {vr(T+4,4)}, v5, s[44:47], s68 offen offset:512
        s_nop 1
        s_branch {ln}""")
        A(f"{lk}:")
        for i in range(8):
            A(f"v_cvt_pk_bf16_f32 v{T+i}, v{a+2*i}, v{a+2*i+1}")
        A(f"""s_lshl_b32 s71, s64, 2
        s_add_u32 s68, s68, {WS_KB}
        s_add_u32 s69, s68, 65536
        buffer_store_dwordx4 {vr(T,4)}, v4, s[44:47], s68 offen
        buffer_store_dwordx4 {vr(T+4,4)}, v4, s[44:47], s69 offen""")
        for hd in range(2):
            n = T + 8 + hd
            for i in range(4):
                A(f"""v_lshlrev_b32 v{T+12}, 16, v{T+hd*4+i}
                v_and_b32 v{T+13}, 0xffff0000, v{T+hd*4+i}""")
                if i == 0:
                    A(f"v_mul_f32 v{n}, v{T+12}, v{T+12}")
                else:
                    A(f"v_fmac_f32 v{n}, v{T+12}, v{T+12}")
                A(f"v_fmac_f32 v{n}, v{T+13}, v{T+13}")
        for hd in range(2):
            n = T + 8 + hd
            A(f"""v_mov_b32 v{T+12}, v{n}
            s_nop 1
            v_permlane32_swap_b32 v{n}, v{T+12}
            s_nop 1
            v_add_f32 v{n}, v{n}, v{T+12}
            s_nop 1
            v_max_f32_dpp v{n}, v{n}, v{n} quad_perm:[1,0,3,2] row_mask:0xf bank_mask:0xf
            s_nop 1
            v_max_f32_dpp v{n}, v{n}, v{n} quad_perm:[2,3,0,1] row_mask:0xf bank_mask:0xf
            s_nop 1
            v_max_f32_dpp v{n}, v{n}, v{n} row_half_mirror row_mask:0xf bank_mask:0xf
            s_nop 1
            v_max_f32_dpp v{n}, v{n}, v{n} row_mirror row_mask:0xf bank_mask:0xf
            s_nop 1
            v_mov_b32 v{T+12}, v{n}
            s_nop 1
            v_permlane16_swap_b32 v{n}, v{T+12}
            s_nop 1
            v_max_f32 v{n}, v{n}, v{T+12}""")
        A(f"""s_lshr_b32 s69, s67, 8
        s_add_u32 s71, s71, s69
        s_add_u32 s71, s71, {WS_KN}
        v_mov_b32 v{T+12}, 0
        buffer_store_dword v{T+8}, v{T+12}, s[44:47], s71 offen
        buffer_store_dword v{T+9}, v{T+12}, s[44:47], s71 offen offset:256
        s_nop 1
        s_branch {ln}""")
        A(f"{lq}:")
        A(f"s_mov_b32 s70, 0x{CQ:08x}")
        for i in range(8):
            x0, x1 = a + 2 * i, a + 2 * i + 1
            A(f"""v_cvt_pk_bf16_f32 v{T+i}, v{x0}, v{x1}
            v_lshlrev_b32 v{x0}, 16, v{T+i}
            v_and_b32 v{x1}, 0xffff0000, v{T+i}
            v_mul_f32 v{x0}, s70, v{x0}
            v_mul_f32 v{x1}, s70, v{x1}
            v_cvt_pk_bf16_f32 v{T+i}, v{x0}, v{x1}""")
        A(f"""s_add_u32 s69, s68, 65536
        buffer_store_dwordx4 {vr(T,4)}, v4, s[44:47], s68 offen
        buffer_store_dwordx4 {vr(T+4,4)}, v4, s[44:47], s69 offen
        s_nop 1
        s_branch {ln}""")
        A(f"""{lf}:
        s_cmp_ge_u32 s66, 43
        s_cbranch_scc1 {ln}
        s_mov_b32 s70, 0x{f2u(LOG2E):08x}
        s_mov_b32 s71, 0x41a00000""")
        for i in range(8):
            x0, x1 = a + 2 * i, a + 2 * i + 1
            bq = 32 + t * 8 + (i >> 1) * 2 + (i & 1)
            p = T + 24
            bf16_round_pair(A, x0, x1, p)
            A(f"""v_lshlrev_b32 v{p+1}, 16, v{bq}
            v_and_b32 v{p+2}, 0xffff0000, v{bq}
            v_add_f32 v{x0}, v{x0}, v{p+1}
            v_add_f32 v{x1}, v{x1}, v{p+2}""")
            bf16_round_pair(A, x0, x1, p)
            A(f"""v_min_f32 v{p+1}, s71, v{x0}
            v_min_f32 v{p+2}, s71, v{x1}
            v_mul_f32 v{p+1}, s70, v{p+1}
            v_mul_f32 v{p+2}, s70, v{p+2}
            v_exp_f32 v{p+1}, v{p+1}
            v_exp_f32 v{p+2}, v{p+2}
            s_nop 0
            v_add_f32 v{p+3}, 2.0, v{p+1}
            v_add_f32 v{p+4}, 2.0, v{p+2}
            v_mul_f32 v{p+1}, v{p+1}, v{p+3}
            v_mul_f32 v{p+2}, v{p+2}, v{p+4}
            v_add_f32 v{p+3}, 2.0, v{p+1}
            v_add_f32 v{p+4}, 2.0, v{p+2}
            v_rcp_f32 v{p+3}, v{p+3}
            v_rcp_f32 v{p+4}, v{p+4}
            v_mul_f32 v{x0}, v{x0}, v{p+1}
            v_mul_f32 v{x1}, v{x1}, v{p+2}
            v_mul_f32 v{x0}, v{x0}, v{p+3}
            v_mul_f32 v{x1}, v{x1}, v{p+4}
            v_cvt_pk_bf16_f32 v{T+i}, v{x0}, v{x1}""")
        A(f"""s_mul_i32 s68, s64, 43
        s_add_u32 s68, s68, s66
        s_lshl_b32 s68, s68, 11
        s_add_u32 s68, s68, {WS_ACT}
        buffer_store_dwordx4 {vr(T,4)}, v4, s[44:47], s68 offen
        buffer_store_dwordx4 {vr(T+4,4)}, v4, s[44:47], s68 offen offset:1024
        s_nop 1""")
        A(f"{ln}:")
    stamp(A, 0, 10)
    if "stamp" in FL:
        A("s_waitcnt vmcnt(0)")
    stamp(A, 0, 11)
    A("s_branch K1_END")

    A("K1_GATE:")
    srd(A, 48, 30, 31, 1024)
    A("""v_and_b32 v2, 7, v1
    v_lshrrev_b32 v3, 3, v1
    v_lshlrev_b32 v4, 7, v2""")
    for q in range(8):
        A(f"buffer_load_dwordx4 {vr(32+4*q,4)}, v4, s[48:51], 0 offen offset:{q*16}")
    A("""v_lshl_add_u32 v5, v3, 10, v4
    s_lshl_b32 s58, s5, 18
    s_lshl_b32 s59, s3, 15
    s_add_u32 s58, s58, s59""")
    for it in range(2):
        A(f"s_add_u32 s59, s58, {it*8192}")
        for q in range(8):
            A(f"buffer_load_dwordx4 {vr(128+it*32+4*q,4)}, v5, s[36:39], s59 offen offset:{q*16}")
    A("s_waitcnt vmcnt(16)")
    for d in range(32):
        A(f"""v_lshlrev_b32 v{64+2*d}, 16, v{32+d}
        v_and_b32 v{65+2*d}, 0xffff0000, v{32+d}""")
    A(f"""s_lshl_b32 s60, s5, 10
    s_lshl_b32 s61, s3, 7
    s_add_u32 s60, s60, s61
    s_add_u32 s60, s60, {WS_G}
    v_lshlrev_b32 v6, 2, v3
    s_mov_b32 s70, 0x{f2u(-LOG2E):08x}""")
    for it in range(4):
        xb = 128 + (it & 1) * 32
        A("""v_mov_b32 v8, 0
        v_mov_b32 v9, 0""")
        A("s_waitcnt vmcnt(8)" if it < 3 else "s_waitcnt vmcnt(0)")
        if it >= 1:
            pass
        for d in range(32):
            A(f"""v_lshlrev_b32 v10, 16, v{xb+d}
            v_and_b32 v11, 0xffff0000, v{xb+d}
            v_mul_f32 v10, v10, v{64+2*d}
            v_mul_f32 v11, v11, v{65+2*d}
            v_cvt_pk_bf16_f32 v12, v10, v11
            v_lshlrev_b32 v10, 16, v12
            v_and_b32 v11, 0xffff0000, v12
            v_add_f32 v8, v8, v10
            v_add_f32 v9, v9, v11""")
        if it + 2 < 4:
            A(f"s_add_u32 s59, s58, {(it+2)*8192}")
            for q in range(8):
                A(f"buffer_load_dwordx4 {vr(xb+4*q,4)}, v5, s[36:39], s59 offen offset:{q*16}")
        A(f"""v_add_f32 v8, v8, v9
        s_nop 1
        v_add_f32_dpp v8, v8, v8 quad_perm:[1,0,3,2] row_mask:0xf bank_mask:0xf
        s_nop 1
        v_add_f32_dpp v8, v8, v8 quad_perm:[2,3,0,1] row_mask:0xf bank_mask:0xf
        s_nop 1
        v_add_f32_dpp v8, v8, v8 row_half_mirror row_mask:0xf bank_mask:0xf
        s_nop 1
        v_cvt_pk_bf16_f32 v9, v8, v8
        v_lshlrev_b32 v8, 16, v9
        v_mul_f32 v8, s70, v8
        v_exp_f32 v8, v8
        s_nop 0
        v_add_f32 v8, 1.0, v8
        v_rcp_f32 v8, v8
        s_nop 0
        v_cvt_pk_bf16_f32 v9, v8, v8
        v_lshlrev_b32 v13, 16, v9
        buffer_store_dword v13, v6, s[44:47], s60 offen offset:{it*32}""")
    A("""K1_END:
    s_endpgm""")


def gen_k2(A):
    QB = 8
    KF = 20
    VF = 36
    P = 52
    NEGM = 68
    SA, SB = 84, 100
    O = 116
    M0, M1 = 132, 133
    A("k2_kernel:")
    A("""s_cmp_ge_u32 s2, 256
    s_cbranch_scc1 K2_END
    s_load_dwordx2 s[32:33], s[0:1], 80
    s_load_dwordx2 s[28:29], s[0:1], 48
    v_lshrrev_b32 v2, 6, v0
    v_and_b32 v1, 63, v0
    s_nop 0
    v_readfirstlane_b32 s3, v2
    s_and_b32 s4, s2, 7
    s_lshl_b32 s4, s4, 2
    s_bfe_u32 s5, s2, 0x20003
    s_add_u32 s4, s4, s5
    s_lshr_b32 s5, s2, 5
    s_waitcnt lgkmcnt(0)""")
    srd(A, 44, 32, 33, WS_SIZE)
    stamp(A, 1, 0)
    A("""v_lshlrev_b32 v2, 4, v1
    s_cmp_ge_u32 s3, 8
    s_cbranch_scc1 K2_FFN""")
    A(f"""s_lshl_b32 s6, s4, 16
    s_lshl_b32 s7, s3, 13
    s_add_u32 s8, s6, s7
    s_add_u32 s9, s8, {WS_KB}
    s_add_u32 s10, s8, {WS_VT}""")
    A(f"""s_lshl_b32 s12, s5, 3
    s_add_u32 s12, s12, s3
    s_lshl_b32 s13, s12, 10
    s_add_u32 s13, s13, s6
    buffer_load_dwordx4 {vr(QB,4)}, v2, s[44:47], s13 offen
    s_lshl_b32 s14, s4, 8
    s_add_u32 s14, s14, {WS_KN}
    v_lshlrev_b32 v3, 2, v1
    buffer_load_dword v12, v3, s[44:47], s14 offen""")
    for q in range(8):
        A(f"""s_add_u32 m0, s7, {q*1024}
        s_add_u32 s11, s9, {q*1024}
        buffer_load_dwordx4 v2, s[44:47], s11 offen lds
        s_add_u32 m0, s7, {65536+q*1024}
        s_add_u32 s11, s10, {q*1024}
        buffer_load_dwordx4 v2, s[44:47], s11 offen lds""")
    A("""v_and_b32 v3, 31, v1
    v_lshrrev_b32 v4, 5, v1
    v_and_b32 v5, 15, v1
    v_lshlrev_b32 v5, 4, v5
    v_lshl_add_u32 v5, v4, 8, v5
    v_add_u32 v13, 0x10000, v5
    v_and_b32 v4, 0x1b, v3
    v_mov_b32 v5, 0x3f803f80
    v_cmp_eq_u32 vcc, 16, v4
    s_nop 1
    v_cndmask_b32 v5, 0, v5, vcc
    s_mov_b32 s30, 0x0000ffff
    s_mov_b32 s31, 0x0000ffff
    s_mov_b32 s23, 0""")
    for r in range(16):
        A(f"v_mov_b32 v{VF+r}, v5")
    A("s_waitcnt vmcnt(16)")
    for i in range(4):
        A(f"""v_lshlrev_b32 v14, 16, v{QB+i}
        v_and_b32 v15, 0xffff0000, v{QB+i}""")
        A("v_mul_f32 v16, v14, v14" if i == 0 else "v_fmac_f32 v16, v14, v14")
        A("v_fmac_f32 v16, v15, v15")
    A("""v_mov_b32 v14, v16
    s_nop 1
    v_permlane32_swap_b32 v16, v14
    s_nop 1
    v_add_f32 v16, v16, v14
    v_max_f32_dpp v12, v12, v12 quad_perm:[1,0,3,2] row_mask:0xf bank_mask:0xf
    s_nop 1
    v_max_f32_dpp v12, v12, v12 quad_perm:[2,3,0,1] row_mask:0xf bank_mask:0xf
    s_nop 1
    v_max_f32_dpp v12, v12, v12 row_half_mirror row_mask:0xf bank_mask:0xf
    s_nop 1
    v_max_f32_dpp v12, v12, v12 row_mirror row_mask:0xf bank_mask:0xf
    s_nop 1
    v_mov_b32 v14, v12
    s_nop 1
    v_permlane16_swap_b32 v12, v14
    s_nop 1
    v_max_f32 v12, v12, v14
    s_nop 1
    v_mov_b32 v14, v12
    s_nop 1
    v_permlane32_swap_b32 v12, v14
    s_nop 1
    v_max_f32 v12, v12, v14
    v_mul_f32 v16, v16, v12
    v_sqrt_f32 v16, v16
    s_nop 0""")
    A(f"v_mul_f32 v{M0}, 0x{f2u(-(1.0+2.0**-7)):08x}, v16")
    A("""s_waitcnt vmcnt(0)
    s_barrier""")
    stamp(A, 1, 1)
    S = [SA, SB]
    A("K2_P2START:")
    for r in range(16):
        A(f"v_mov_b32 v{NEGM+r}, v{M0}")
        A(f"v_mov_b32 v{P+r}, 0")
        A(f"v_mov_b32 v{O+r}, 0")
    A(f"""v_mov_b32 v6, v2
    v_mov_b32 v7, v13
    ds_read_b128 {vr(KF,4)}, v6
    ds_read_b128 {vr(KF+4,4)}, v6 offset:1024
    s_waitcnt lgkmcnt(1)
    v_mfma_f32_32x32x16_bf16 {vr(SA,16)}, {vr(KF,4)}, {vr(QB,4)}, {vr(NEGM,16)}
    s_nop 7
    s_nop 3
    s_mov_b32 s20, 0
    K2_P2:""")
    for t in range(4):
        X, Y = S[t & 1], S[(t + 1) & 1]
        vcur, vprv = VF + (t & 1) * 8, VF + ((t + 1) & 1) * 8
        pcur, pprv = P + (t & 1) * 8, P + ((t + 1) & 1) * 8
        kn = KF + ((t + 1) % 4) * 4
        A(f"""ds_read_b128 {vr(KF+((t+2)%4)*4,4)}, v6 offset:{(t+2)*1024}
        s_mov_b64 exec, s[30:31]
        ds_read_b128 {vr(vcur,4)}, v7 offset:{t*1024}
        ds_read_b128 {vr(vcur+4,4)}, v7 offset:{t*1024+512}
        s_mov_b64 exec, -1
        s_waitcnt lgkmcnt(3)""")
        def mf(x):
            if "nomfma" not in FL:
                A(x)
        def ex(r):
            if "noexp" in FL:
                A(f"v_mov_b32 v{X+r}, v{X+r}")
            elif "noexp2" not in FL:
                A(f"v_exp_f32 v{X+r}, v{X+r}")
        mf(f"v_mfma_f32_32x32x16_bf16 {vr(Y,16)}, {vr(kn,4)}, {vr(QB,4)}, {vr(NEGM,16)}")
        for r in range(0, 5):
            ex(r)
        mf(f"v_mfma_f32_32x32x16_bf16 {vr(O,16)}, {vr(vprv,4)}, {vr(pprv,4)}, {vr(O,16)}")
        for r in range(5, 10):
            ex(r)
        mf(f"v_mfma_f32_32x32x16_bf16 {vr(O,16)}, {vr(vprv+4,4)}, {vr(pprv+4,4)}, {vr(O,16)}")
        for r in range(10, 16):
            ex(r)
        if "nocvt" not in FL:
            for i in range(8):
                A(f"v_cvt_pk_bf16_f32 v{pcur+i}, v{X+2*i}, v{X+2*i+1}")
    A("""v_add_u32 v6, 0x1000, v6
    v_add_u32 v7, 0x1000, v7
    s_add_u32 s20, s20, 1
    s_cmp_lt_u32 s20, 16
    s_cbranch_scc1 K2_P2""")
    A(f"""s_waitcnt lgkmcnt(0)
    s_nop 1
    v_mfma_f32_32x32x16_bf16 {vr(O,16)}, {vr(VF+8,4)}, {vr(P+8,4)}, {vr(O,16)}
    v_mfma_f32_32x32x16_bf16 {vr(O,16)}, {vr(VF+12,4)}, {vr(P+12,4)}, {vr(O,16)}
    s_nop 15
    s_nop 3""")
    A(f"""s_mov_b32 s24, 0x27000000
    v_cmp_nle_f32 vcc, s24, v{O+8}
    s_cmp_eq_u32 s23, 0
    s_cbranch_scc0 K2_FIN
    s_cbranch_vccz K2_FIN
    s_mov_b32 s23, 1""" if "forcefb" not in FL and "nofb" not in FL else "s_branch K2_FIN" if "nofb" in FL else f"""s_cmp_eq_u32 s23, 0
    s_cbranch_scc0 K2_FIN
    s_mov_b32 s23, 1""")
    A(f"""v_mov_b32 v{M0}, 0xff800000
    v_mov_b32 v{M1}, 0xff800000
    v_mov_b32 v6, v2
    ds_read_b128 {vr(KF,4)}, v6
    ds_read_b128 {vr(KF+4,4)}, v6 offset:1024
    s_waitcnt lgkmcnt(1)
    v_mfma_f32_32x32x16_bf16 {vr(SA,16)}, {vr(KF,4)}, {vr(QB,4)}, 0
    s_nop 7
    s_mov_b32 s20, 0
    K2_P1:""")
    for t in range(4):
        X, Y = S[t & 1], S[(t + 1) & 1]
        A(f"""ds_read_b128 {vr(KF+((t+2)%4)*4,4)}, v6 offset:{(t+2)*1024}
        s_waitcnt lgkmcnt(1)
        v_mfma_f32_32x32x16_bf16 {vr(Y,16)}, {vr(KF+((t+1)%4)*4,4)}, {vr(QB,4)}, 0
        s_nop 1""")
        for i in range(4):
            A(f"""v_max3_f32 v{M0}, v{M0}, v{X+4*i}, v{X+4*i+1}
            v_max3_f32 v{M1}, v{M1}, v{X+4*i+2}, v{X+4*i+3}""")
    A(f"""v_add_u32 v6, 0x1000, v6
    s_add_u32 s20, s20, 1
    s_cmp_lt_u32 s20, 16
    s_cbranch_scc1 K2_P1
    v_max_f32 v{M0}, v{M0}, v{M1}
    s_nop 1
    v_mov_b32 v{M1}, v{M0}
    s_nop 1
    v_permlane32_swap_b32 v{M0}, v{M1}
    s_nop 1
    v_max_f32 v{M0}, v{M0}, v{M1}
    v_sub_f32 v{M0}, 0, v{M0}
    s_waitcnt lgkmcnt(0)
    s_nop 7
    s_nop 7
    s_branch K2_P2START
    K2_FIN:""")
    stamp(A, 1, 3)
    A(f"""v_rcp_f32 v{M0}, v{O+8}
    s_nop 0""")
    for r in range(8):
        A(f"v_mul_f32 v{O+r}, v{O+r}, v{M0}")
    for i in range(4):
        A(f"v_cvt_pk_bf16_f32 v{P+i}, v{O+2*i}, v{O+2*i+1}")
    A(f"""s_lshl_b32 s13, s12, 5
    s_add_u32 s13, s13, s4
    s_lshl_b32 s13, s13, 10
    s_add_u32 s13, s13, {WS_OB}
    buffer_store_dwordx4 {vr(P,4)}, v2, s[44:47], s13 offen
    s_branch K2_END""")

    NS = 6
    BF = 16
    AF = 112
    ACC = 120
    A("K2_FFN:")
    srd(A, 40, 28, 29, 1376 * 512 * 2)
    A(f"""s_sub_u32 s3, s3, 8
    s_lshr_b32 s4, s2, 3
    s_and_b32 s5, s2, 7
    s_lshl_b32 s8, s4, 1
    s_mul_i32 s10, s8, 86
    s_lshl_b32 s10, s10, 10
    s_add_u32 s10, s10, {WS_ACT}
    s_add_u32 s11, s10, {86*1024}
    s_mov_b32 s14, 0
    s_lshl_b32 s15, s3, 14
    s_add_u32 s15, s15, 0x20000""")
    A("""v_lshrrev_b32 v4, 2, v1
    v_lshlrev_b32 v4, 10, v4
    v_and_b32 v6, 3, v1
    v_lshl_add_u32 v4, v6, 4, v4
    s_lshl_b32 s9, s5, 7
    s_lshl_b32 s12, s3, 6
    s_add_u32 s9, s9, s12
    v_add_u32 v8, s9, v4""")
    A("""v_bfe_u32 v5, v1, 2, 2
    v_lshrrev_b32 v6, 5, v1
    v_lshl_add_u32 v6, v6, 2, v5
    v_lshlrev_b32 v6, 6, v6
    v_add_u32 v6, s15, v6
    v_bfe_u32 v7, v1, 0, 1
    v_lshl_add_u32 v6, v7, 5, v6
    v_bfe_u32 v7, v1, 4, 1
    v_lshl_add_u32 v6, v7, 4, v6
    v_bfe_u32 v7, v1, 1, 1
    v_lshl_add_u32 v3, v7, 3, v6""")
    for i in range(32):
        A(f"v_mov_b32 v{ACC+i}, 0")

    def issue(stg):
        for q in range(2):
            A(f"""s_add_u32 m0, s15, {stg*2048 + q*1024}
            s_add_u32 s52, s14, {q*16384}
            buffer_load_dwordx4 v8, s[40:43], s52 offen lds""")
        for st in range(2):
            for u in range(2):
                A(f"buffer_load_dwordx4 {vr(BF+stg*16+(u*2+st)*4,4)}, v2, s[44:47], s{10+st} offen offset:{u*1024}")
        A("""s_add_u32 s14, s14, 32768
        s_add_u32 s10, s10, 2048
        s_add_u32 s11, s11, 2048""")

    for stg in range(NS - 1):
        issue(stg)
    A("""s_barrier
    s_mov_b32 s53, 0
    K2F_LOOP:""")
    for stg in range(NS):
        issue((stg + NS - 1) % NS)
        A(f"s_waitcnt vmcnt({6*(NS-1)})")
        for u in range(2):
            for rd in range(2):
                A(f"ds_read_b64_tr_b16 {vr(AF+u*4+rd*2,2)}, v3 offset:{stg*2048+(16*u+8*rd)*64}")
        for u in range(2):
            A(f"s_waitcnt lgkmcnt({2 if u == 0 else 0})")
            for st in range(2):
                acc = vr(ACC + st * 16, 16)
                A(f"v_mfma_f32_32x32x16_bf16 {acc}, {vr(AF+u*4,4)}, {vr(BF+stg*16+(u*2+st)*4,4)}, {acc}")
        A("""s_add_u32 s53, s53, 1
        s_cmp_ge_u32 s53, 43
        s_cbranch_scc1 K2F_DONE""")
    A("s_branch K2F_LOOP")
    A(f"""K2F_DONE:
    s_lshl_b32 s10, s2, 2
    s_lshl_b32 s11, s3, 1
    s_add_u32 s10, s10, s11
    s_lshl_b32 s10, s10, 11
    s_add_u32 s10, s10, {WS_PART}
    v_lshlrev_b32 v4, 5, v1
    s_nop 15
    s_nop 3""")
    for st in range(2):
        for i in range(8):
            A(f"v_cvt_pk_bf16_f32 v{BF+st*8+i}, v{ACC+st*16+2*i}, v{ACC+st*16+2*i+1}")
        A(f"""buffer_store_dwordx4 {vr(BF+st*8,4)}, v4, s[44:47], s10 offen offset:{st*2048}
        buffer_store_dwordx4 {vr(BF+st*8+4,4)}, v4, s[44:47], s10 offen offset:{st*2048+16}""")
    A("""K2_END:
    s_endpgm""")


def gen_k3(A):
    BF = 16
    AF = 80
    ACC = 96
    PB = 160
    T = 224
    A("k3_kernel:")
    A("""s_cmp_ge_u32 s2, 256
    s_cbranch_scc1 K3_END
    s_load_dwordx2 s[20:21], s[0:1], 16
    s_load_dwordx2 s[32:33], s[0:1], 80
    s_load_dwordx2 s[34:35], s[0:1], 64
    v_lshrrev_b32 v2, 6, v0
    v_and_b32 v1, 63, v0
    s_nop 0
    v_readfirstlane_b32 s3, v2
    s_lshr_b32 s4, s2, 3
    s_and_b32 s5, s2, 7
    s_waitcnt lgkmcnt(0)""")
    srd(A, 44, 32, 33, WS_SIZE)
    srd(A, 48, 34, 35, 2048 * 512 * 2)
    srd(A, 40, 20, 21, 512 * 512 * 2)
    stamp(A, 2, 0)
    A(f"""s_lshl_b32 s8, s4, 6
    s_lshl_b32 s13, s3, 3
    s_add_u32 s10, s8, s13
    s_lshl_b32 s10, s10, 10
    s_add_u32 s10, s10, {WS_OB}
    s_add_u32 s11, s10, 32768
    s_lshl_b32 s14, s3, 17
    s_lshl_b32 s15, s3, 14""")
    A("""v_lshrrev_b32 v4, 3, v1
    v_lshlrev_b32 v4, 10, v4
    v_bfe_u32 v5, v1, 4, 1
    v_lshlrev_b32 v5, 2, v5
    v_and_b32 v6, 7, v1
    v_xor_b32 v5, v5, v6
    v_lshl_add_u32 v4, v5, 4, v4
    s_lshl_b32 s9, s5, 7
    v_add_u32 v2, s9, v4""")
    A("""v_bfe_u32 v5, v1, 2, 2
    v_lshrrev_b32 v6, 5, v1
    v_lshl_add_u32 v6, v6, 2, v5
    v_lshlrev_b32 v6, 7, v6
    v_add_u32 v6, s15, v6
    v_bfe_u32 v7, v1, 0, 1
    v_lshl_add_u32 v6, v7, 5, v6
    v_bfe_u32 v7, v1, 4, 1
    v_lshl_add_u32 v6, v7, 4, v6
    v_bfe_u32 v7, v1, 1, 1
    v_lshl_add_u32 v6, v7, 3, v6
    v_bfe_u32 v7, v1, 3, 1
    v_lshl_add_u32 v3, v7, 6, v6
    v_xor_b32 v7, 1, v7
    v_lshl_add_u32 v4, v7, 6, v6
    v_lshlrev_b32 v5, 4, v1""")

    for stg in range(4):
        for q in range(4):
            A(f"""s_add_u32 m0, s15, {stg*4096 + q*1024}
            s_add_u32 s52, s14, {stg*32768 + q*8192}
            buffer_load_dwordx4 v2, s[40:43], s52 offen lds""")
        for st in range(2):
            for u in range(2):
                A(f"buffer_load_dwordx4 {vr(BF+stg*16+(u*2+st)*4,4)}, v5, s[44:47], s{10+st} offen offset:{u*1024}")
        A("""s_add_u32 s10, s10, 2048
        s_add_u32 s11, s11, 2048""")
    A(f"""s_lshl_b32 s16, s2, 2
    s_add_u32 s16, s16, s3
    s_lshl_b32 s16, s16, 11
    s_add_u32 s16, s16, {WS_PART}
    v_lshlrev_b32 v6, 5, v1
    buffer_load_dwordx4 {vr(PB,4)}, v6, s[44:47], s16 offen
    buffer_load_dwordx4 {vr(PB+4,4)}, v6, s[44:47], s16 offen offset:16""")
    A(f"""s_and_b32 s8, s3, 1
    s_lshr_b32 s9, s3, 1
    s_lshl_b32 s10, s4, 6
    s_lshl_b32 s11, s8, 5
    s_add_u32 s10, s10, s11
    v_and_b32 v7, 31, v1
    v_add_u32 v7, s10, v7
    v_lshlrev_b32 v8, 2, v7
    s_mov_b32 s12, {WS_G}
    buffer_load_dword v9, v8, s[44:47], s12 offen""")
    for i in range(64):
        A(f"v_mov_b32 v{ACC+i}, 0")
    stamp(A, 2, 1)
    for stg in range(4):
        A(f"s_waitcnt vmcnt({3 + 8*(3-stg)})")
        for u in range(2):
            for nt in range(2):
                for rd in range(2):
                    A(f"ds_read_b64_tr_b16 {vr(AF+(u*2+nt)*4+rd*2,2)}, v{3+nt} offset:{stg*4096+(16*u+8*rd)*128}")
        for u in range(2):
            A(f"s_waitcnt lgkmcnt({4 if u == 0 else 0})")
            for nt in range(2):
                for st in range(2):
                    acc = vr(ACC + (nt * 2 + st) * 16, 16)
                    A(f"v_mfma_f32_32x32x16_bf16 {acc}, {vr(AF+(u*2+nt)*4,4)}, {vr(BF+stg*16+(u*2+st)*4,4)}, {acc}")
    A("""s_nop 15
    s_nop 3""")
    stamp(A, 2, 2)
    A("""v_lshlrev_b32 v6, 4, v1
    v_add_u32 v6, s15, v6""")
    for tl in range(4):
        for q in range(4):
            A(f"ds_write_b128 v6, {vr(ACC+tl*16+q*4,4)} offset:{tl*4096+q*1024}")
    A("""s_waitcnt lgkmcnt(0)
    s_barrier
    s_lshl_b32 s13, s3, 12
    v_lshlrev_b32 v6, 4, v1
    v_add_u32 v6, s13, v6""")
    for w in range(4):
        for q in range(4):
            A(f"ds_read_b128 {vr(ACC+w*16+q*4,4)}, v6 offset:{w*16384+q*1024}")
    A("""v_lshlrev_b32 v8, 10, v7
    v_lshrrev_b32 v10, 5, v1
    v_lshl_add_u32 v8, v10, 5, v8
    s_lshl_b32 s14, s5, 7
    s_lshl_b32 s15, s9, 6
    s_add_u32 s14, s14, s15
    s_waitcnt vmcnt(0) lgkmcnt(0)
    v_sub_f32 v10, 1.0, v9
    v_cvt_pk_bf16_f32 v11, v10, v10
    v_lshlrev_b32 v10, 16, v11""")
    for i in range(8):
        a0, a1 = ACC + 2 * i, ACC + 2 * i + 1
        b0, b1 = PB + 16 + 2 * i, PB + 16 + 2 * i + 1
        A(f"""v_add_f32 v{a0}, v{a0}, v{a0+16}
        v_add_f32 v{a1}, v{a1}, v{a1+16}
        v_add_f32 v{a0+32}, v{a0+32}, v{a0+48}
        v_add_f32 v{a1+32}, v{a1+32}, v{a1+48}
        v_add_f32 v{a0}, v{a0}, v{a0+32}
        v_add_f32 v{a1}, v{a1}, v{a1+32}
        v_lshlrev_b32 v{b0}, 16, v{PB+i}
        v_and_b32 v{b1}, 0xffff0000, v{PB+i}""")
        bf16_round_pair(A, a0, a1, T + 16)
        A(f"""v_mul_f32 v{a0}, v{a0}, v9
        v_mul_f32 v{a1}, v{a1}, v9
        v_mul_f32 v{b0}, v{b0}, v10
        v_mul_f32 v{b1}, v{b1}, v10""")
        bf16_round_pair(A, a0, a1, T + 16)
        bf16_round_pair(A, b0, b1, T + 17)
        A(f"""v_add_f32 v{a0}, v{a0}, v{b0}
        v_add_f32 v{a1}, v{a1}, v{b1}
        v_cvt_pk_bf16_f32 v{T+i}, v{a0}, v{a1}""")
    stamp(A, 2, 3)
    A(f"""buffer_store_dwordx4 {vr(T,4)}, v8, s[48:51], s14 offen
    buffer_store_dwordx4 {vr(T+4,4)}, v8, s[48:51], s14 offen offset:16
    K3_END:
    s_endpgm""")


HEADER = """; Kernarg layout for this problem (88 bytes, ptrs only, base s[0:1]):
; @launch kernel=k1_kernel grid=(256,1,1) block=(512,1,1) lds=135168
; @launch kernel=k2_kernel grid=(256,1,1) block=(640,1,1) lds=163840
; @launch kernel=k3_kernel grid=(256,1,1) block=(256,1,1) lds=65536
.amdgcn_target "amdgcn-amd-amdhsa--gfx950"
.text
"""


def kd(name, vgpr, sgpr=102):
    acc = (vgpr + 3) // 4 * 4
    return f""".amdhsa_kernel {name}
  .amdhsa_next_free_vgpr {vgpr}
  .amdhsa_next_free_sgpr {sgpr}
  .amdhsa_accum_offset {acc}
  .amdhsa_group_segment_fixed_size 0
  .amdhsa_kernarg_size 88
  .amdhsa_user_sgpr_count 2
  .amdhsa_user_sgpr_kernarg_segment_ptr 1
  .amdhsa_system_sgpr_workgroup_id_x 1
.end_amdhsa_kernel
"""


def main():
    out = HEADER
    for nm, fn in (("k1_kernel", gen_k1), ("k2_kernel", gen_k2), ("k3_kernel", gen_k3)):
        A = Asm()
        A.lab = {"k1_kernel": 1000, "k2_kernel": 2000, "k3_kernel": 3000}[nm]
        fn(A)
        out += f".globl {nm}\n.p2align 8\n.type {nm},@function\n" + A.text()
    out += '.section .rodata,"a"\n'
    for nm, v in (("k1_kernel", 192), ("k2_kernel", 152), ("k3_kernel", 244)):
        if "stamp" in FL:
            v = 256 if nm != "k2_kernel" else 168
        out += ".p2align 6\n" + kd(nm, v)
    path = sys.argv[1] if len(sys.argv) > 1 else f"cdna_kernels/{NAME}.s"
    open(path, "w").write(out)


if __name__ == "__main__":
    main()
```

```python
import sys, struct, os
FL = set(os.environ.get("FL", "").split(","))
STFLAG = os.environ.get("STFLAG", "")

NAME = "gated_mix__mha_block__dense_activation_mish__prompt"

WS_QB = 0x000000
WS_QH = 0x200000
WS_QL = 0x400000
WS_KB = 0x600000
WS_VT = 0x800000
WS_ACT = 0xA00000
WS_OB = 0x1000000
WS_G = 0x1200000
WS_KN = 0x1210000
WS_PART = 0x1400000
WS_SIZE = 0x2800000

LOG2E = 1.4426950408889634


def f2u(x):
    return struct.unpack("<I", struct.pack("<f", x))[0]


class Asm:
    def __init__(self):
        self.lines = []
        self.lab = 0

    def __call__(self, s):
        for l in s.strip("\n").split("\n"):
            l = l.strip()
            if l:
                if "offset:" in l:
                    off = int(l.split("offset:")[1].split()[0], 0)
                    assert off < (4096 if l.startswith("buffer") else 65536), l
                if l.startswith("buffer_store") and STFLAG:
                    l = l + " " + STFLAG
                self.lines.append("    " + l if not l.endswith(":") else l)

    def label(self, p="L"):
        self.lab += 1
        return f"{p}_{self.lab}"

    def text(self):
        return "\n".join(self.lines) + "\n"


def vr(a, n):
    return f"v[{a}:{a+n-1}]"


def srd(A, d, lo, hi, size):
    A(f"""s_mov_b32 s{d}, s{lo}
    s_and_b32 s{d+1}, s{hi}, 0xffff
    s_mov_b32 s{d+2}, {size}
    s_mov_b32 s{d+3}, 0x20000""")


STAMP_BASE = 0x2400000


def stamp(A, kern, idx):
    if "stamp" not in FL:
        return
    r = 166 if kern == 1 else 254
    A(f"""s_memtime s[92:93]
    s_lshl_b32 s94, s2, 4
    s_add_u32 s94, s94, s3
    s_lshl_b32 s94, s94, 6
    s_add_u32 s94, s94, {STAMP_BASE + kern*0x40000 + idx*4}
    s_waitcnt lgkmcnt(0)
    v_mov_b32 v{r+1}, s92
    v_mov_b32 v{r}, 0
    buffer_store_dword v{r+1}, v{r}, s[44:47], s94 offen
    s_memrealtime s[92:93]
    s_waitcnt lgkmcnt(0)
    v_mov_b32 v{r+1}, s92
    s_add_u32 s94, s94, 0x100000
    buffer_store_dword v{r+1}, v{r}, s[44:47], s94 offen""")


def bf16_round_pair(A, a, b, tmp):
    A(f"""v_cvt_pk_bf16_f32 v{tmp}, v{a}, v{b}
    v_lshlrev_b32 v{a}, 16, v{tmp}
    v_and_b32 v{b}, 0xffff0000, v{tmp}""")


def gen_k1(A):
    BUF = 45056
    A("k1_kernel:")
    A("""s_cmp_ge_u32 s2, 256
    s_cbranch_scc1 K1_END
    s_load_dwordx16 s[16:31], s[0:1], 0
    s_load_dwordx2 s[32:33], s[0:1], 80
    v_lshrrev_b32 v2, 6, v0
    v_and_b32 v1, 63, v0
    s_nop 0
    v_readfirstlane_b32 s3, v2
    s_lshr_b32 s4, s2, 3
    s_and_b32 s5, s2, 7
    s_waitcnt lgkmcnt(0)""")
    srd(A, 36, 16, 17, 2048 * 512 * 2)
    srd(A, 44, 32, 33, WS_SIZE)
    stamp(A, 0, 0)
    A("""s_cmp_ge_u32 s2, 248
    s_cbranch_scc1 %s""" % ("K1_END" if "nogate" in FL else "K1_GATE"))
    srd(A, 48, 26, 27, 1376 * 2)
    A("""s_mov_b32 s42, %d
    s_mov_b32 s6, 2752
    s_cmp_lt_u32 s4, 16
    s_cselect_b32 s40, s18, s24
    s_cselect_b32 s41, s19, s25
    s_cselect_b32 s42, %d, s42
    s_mov_b32 s43, 0x20000
    s_cselect_b32 s6, 3072, s6
    s_cselect_b32 s8, 0, 16
    s_and_b32 s41, s41, 0xffff
    s_sub_u32 s8, s4, s8
    s_mul_i32 s7, s8, 96
    s_mul_i32 s9, s8, 3""" % (512 * 1376 * 2, 512 * 1536 * 2))
    A("""v_and_b32 v2, 31, v1
    v_lshrrev_b32 v3, 5, v1""")
    A("""v_lshrrev_b32 v4, 3, v1
    v_lshlrev_b32 v4, 10, v4
    v_and_b32 v5, 7, v1
    v_lshrrev_b32 v6, 4, v1
    v_xor_b32 v7, v5, v6
    v_lshl_add_u32 v10, v7, 4, v4
    v_add_u32 v6, 4, v6
    v_xor_b32 v7, v5, v6
    v_lshl_add_u32 v11, v7, 4, v4""")
    A("""s_add_u32 s10, s3, 8
    s_cmp_lt_u32 s3, 4
    s_cselect_b32 s10, s10, s3
    s_lshl_b32 s11, s7, 1
    s_mov_b32 s12, 0x15555556
    s_lshl_b32 s13, s3, 6
    s_lshl_b32 s14, s10, 6""")
    for qq in range(2):
        A(f"""v_add_u32 v4, s{13+qq}, v1
        v_mul_hi_u32 v5, v4, s12
        v_mul_u32_u24 v6, 12, v5
        v_sub_u32 v6, v4, v6
        v_mul_lo_u32 v5, v5, s6
        v_lshl_add_u32 v5, v6, 4, v5
        v_add_u32 v{12+qq}, s11, v5""")
    A("""s_lshl_b32 s58, s5, 18
    s_lshl_b32 s59, s3, 15
    s_add_u32 s58, s58, s59
    s_lshl_b32 s60, s3, 12
    s_lshl_b32 s61, s3, 10
    s_add_u32 s61, s61, 32768
    s_lshl_b32 s57, s10, 10
    s_add_u32 s57, s57, 32768
    s_lshl_b32 s62, s6, 6""")

    def dma(c, b):
        for q in range(4):
            A(f"""s_add_u32 m0, s60, {b*BUF + q*1024}
            s_add_u32 s63, s58, {q*8192 + c*128}
            buffer_load_dwordx4 v{10 + (q&1)}, s[36:39], s63 offen lds""")
        A(f"s_mul_i32 s63, s62, {c}")
        for qq in range(2):
            A(f"""s_add_u32 m0, s{61 if qq == 0 else 57}, {b*BUF}
            s_nop 0
            buffer_load_dwordx4 v{12+qq}, s[40:43], s63 offen lds""")

    A("""v_lshlrev_b32 v4, 3, v3
    v_add_u32 v4, s11, v4""")
    for t in range(3):
        for q in range(4):
            A(f"buffer_load_dwordx2 v[{32+t*8+q*2}:{32+t*8+q*2+1}], v4, s[48:51], 0 offen offset:{t*64+q*16}")
    dma(0, 0)
    dma(1, 1)
    A("""v_lshrrev_b32 v4, 1, v2
    v_and_b32 v4, 7, v4
    v_lshlrev_b32 v5, 7, v2
    v_add_u32 v5, s60, v5""")
    for u in range(4):
        A(f"""v_add_u32 v6, {2*u}, v3
        v_xor_b32 v6, v6, v4
        v_lshl_add_u32 v{16+u}, v6, 4, v5""")
    for b in (1, 2):
        for u in range(4):
            A(f"v_add_u32 v{16+4*b+u}, {b*BUF}, v{16+u}")
    A("""v_bfe_u32 v4, v1, 2, 2
    v_lshl_add_u32 v4, v3, 3, v4
    v_mul_u32_u24 v4, 192, v4
    v_bfe_u32 v5, v1, 4, 1
    v_lshl_add_u32 v4, v5, 5, v4
    v_and_b32 v5, 3, v1
    v_lshl_add_u32 v4, v5, 3, v4""")
    for b in range(3):
        A(f"v_add_u32 v{28+b}, {32768 + b*BUF}, v4")

    XF = 56
    WF = 64
    ACC = 88
    T = 136
    A("""s_cmp_ge_u32 s4, 16
    s_cbranch_scc1 K1_INITB""")
    for i in range(48):
        A(f"v_mov_b32 v{ACC+i}, 0")
    A("""s_branch K1_INITD
    K1_INITB:
    s_waitcnt vmcnt(12)""")
    for t in range(3):
        for i in range(8):
            bq = 32 + t * 8 + (i >> 1) * 2 + (i & 1)
            A(f"""v_lshlrev_b32 v{ACC+t*16+2*i}, 16, v{bq}
            v_and_b32 v{ACC+t*16+2*i+1}, 0xffff0000, v{bq}""")
    A("K1_INITD:")

    def reads(b, u, st):
        A(f"ds_read_b128 {vr(XF+st*4,4)}, v{16+4*b+u}")
        for t in range(3):
            for rd in range(2):
                A(f"ds_read_b64_tr_b16 {vr(WF+st*12+t*4+rd*2,2)}, v{28+b} offset:{(16*u+4*rd)*192+64*t}")

    def mainloop(variant):
        for c in range(8):
            b = c % 3
            if c < 7:
                A("s_waitcnt vmcnt(6)")
            else:
                A("s_waitcnt vmcnt(0)")
            A("s_barrier")
            stamp(A, 0, 1 + c)
            reads(b, 0, 0)
            if c + 2 < 8:
                dma(c + 2, (c + 2) % 3)
            for u in range(4):
                st = u & 1
                if u < 3:
                    reads(b, u + 1, st ^ 1)
                    A("s_waitcnt lgkmcnt(7)")
                else:
                    A("s_waitcnt lgkmcnt(0)")
                for t in range(3):
                    acc = vr(ACC + t * 16, 16)
                    xf = vr(XF + st * 4, 4)
                    wf = vr(WF + st * 12 + t * 4, 4)
                    if variant[t] == "T":
                        A(f"v_mfma_f32_32x32x16_bf16 {acc}, {wf}, {xf}, {acc}")
                    else:
                        A(f"v_mfma_f32_32x32x16_bf16 {acc}, {xf}, {wf}, {acc}")
        A("s_nop 15")
        A("s_nop 3")

    A("""s_cmp_eq_u32 s4, 10
    s_cbranch_scc1 K1_TTN
    s_cmp_lt_u32 s4, 11
    s_cbranch_scc1 K1_TTT
    s_cmp_lt_u32 s4, 16
    s_cbranch_scc1 K1_NNN
    K1_TTT:""")
    mainloop("TTT")
    A("s_branch K1_EPI")
    A("K1_TTN:")
    mainloop("TTN")
    A("s_branch K1_EPI")
    A("K1_NNN:")
    mainloop("NNN")
    A("K1_EPI:")
    stamp(A, 0, 9)

    A(f"""v_lshlrev_b32 v4, 4, v1
    v_bfe_u32 v5, v1, 4, 1
    v_lshlrev_b32 v5, 16, v5
    v_lshl_add_u32 v5, v3, 8, v5
    v_and_b32 v6, 15, v1
    v_lshl_add_u32 v5, v6, 4, v5""")
    A("""s_lshl_b32 s64, s5, 3
    s_add_u32 s64, s64, s3
    s_lshl_b32 s65, s64, 10""")
    CQ = f2u(0.25 * LOG2E)
    for t in range(3):
        lq, lk, lv, lf, ln = (A.label("K1E") for _ in range(5))
        a = ACC + t * 16
        A(f"""s_add_u32 s66, s9, {t}
        s_cmp_ge_u32 s4, 16
        s_cbranch_scc1 {lf}
        s_and_b32 s67, s66, 15
        s_lshl_b32 s67, s67, 17
        s_add_u32 s68, s65, s67
        s_cmp_lt_u32 s66, 16
        s_cbranch_scc1 {lq}
        s_cmp_lt_u32 s66, 32
        s_cbranch_scc1 {lk}
        {lv}:""")
        for i in range(8):
            A(f"v_cvt_pk_bf16_f32 v{T+i}, v{a+2*i}, v{a+2*i+1}")
        A(f"""s_add_u32 s68, s68, {WS_VT}
        buffer_store_dwordx4 {vr(T,4)}, v5, s[44:47], s68 offen
        buffer_store_dwordx4 {vr(T+4,4)}, v5, s[44:47], s68 offen offset:512
        s_nop 1
        s_branch {ln}""")
        A(f"{lk}:")
        for i in range(8):
            A(f"v_cvt_pk_bf16_f32 v{T+i}, v{a+2*i}, v{a+2*i+1}")
        A(f"""s_lshl_b32 s71, s64, 2
        s_add_u32 s68, s68, {WS_KB}
        s_add_u32 s69, s68, 65536
        buffer_store_dwordx4 {vr(T,4)}, v4, s[44:47], s68 offen
        buffer_store_dwordx4 {vr(T+4,4)}, v4, s[44:47], s69 offen""")
        for hd in range(2):
            n = T + 8 + hd
            for i in range(4):
                A(f"""v_lshlrev_b32 v{T+12}, 16, v{T+hd*4+i}
                v_and_b32 v{T+13}, 0xffff0000, v{T+hd*4+i}""")
                if i == 0:
                    A(f"v_mul_f32 v{n}, v{T+12}, v{T+12}")
                else:
                    A(f"v_fmac_f32 v{n}, v{T+12}, v{T+12}")
                A(f"v_fmac_f32 v{n}, v{T+13}, v{T+13}")
        for hd in range(2):
            n = T + 8 + hd
            A(f"""v_mov_b32 v{T+12}, v{n}
            s_nop 1
            v_permlane32_swap_b32 v{n}, v{T+12}
            s_nop 1
            v_add_f32 v{n}, v{n}, v{T+12}
            s_nop 1
            v_max_f32_dpp v{n}, v{n}, v{n} quad_perm:[1,0,3,2] row_mask:0xf bank_mask:0xf
            s_nop 1
            v_max_f32_dpp v{n}, v{n}, v{n} quad_perm:[2,3,0,1] row_mask:0xf bank_mask:0xf
            s_nop 1
            v_max_f32_dpp v{n}, v{n}, v{n} row_half_mirror row_mask:0xf bank_mask:0xf
            s_nop 1
            v_max_f32_dpp v{n}, v{n}, v{n} row_mirror row_mask:0xf bank_mask:0xf
            s_nop 1
            v_mov_b32 v{T+12}, v{n}
            s_nop 1
            v_permlane16_swap_b32 v{n}, v{T+12}
            s_nop 1
            v_max_f32 v{n}, v{n}, v{T+12}""")
        A(f"""s_lshr_b32 s69, s67, 8
        s_add_u32 s71, s71, s69
        s_add_u32 s71, s71, {WS_KN}
        v_mov_b32 v{T+12}, 0
        buffer_store_dword v{T+8}, v{T+12}, s[44:47], s71 offen
        buffer_store_dword v{T+9}, v{T+12}, s[44:47], s71 offen offset:256
        s_nop 1
        s_branch {ln}""")
        A(f"{lq}:")
        A(f"s_mov_b32 s70, 0x{CQ:08x}")
        for i in range(8):
            x0, x1 = a + 2 * i, a + 2 * i + 1
            A(f"""v_cvt_pk_bf16_f32 v{T+i}, v{x0}, v{x1}
            v_lshlrev_b32 v{x0}, 16, v{T+i}
            v_and_b32 v{x1}, 0xffff0000, v{T+i}
            v_mul_f32 v{x0}, s70, v{x0}
            v_mul_f32 v{x1}, s70, v{x1}
            v_cvt_pk_bf16_f32 v{T+i}, v{x0}, v{x1}""")
        A(f"""s_add_u32 s69, s68, 65536
        buffer_store_dwordx4 {vr(T,4)}, v4, s[44:47], s68 offen
        buffer_store_dwordx4 {vr(T+4,4)}, v4, s[44:47], s69 offen
        s_nop 1
        s_branch {ln}""")
        A(f"""{lf}:
        s_cmp_ge_u32 s66, 43
        s_cbranch_scc1 {ln}
        s_mov_b32 s70, 0x{f2u(LOG2E):08x}
        s_mov_b32 s71, 0x41a00000""")
        for i in range(8):
            x0, x1 = a + 2 * i, a + 2 * i + 1
            p = T + 24
            bf16_round_pair(A, x0, x1, p)
            A(f"""v_min_f32 v{p+1}, s71, v{x0}
            v_min_f32 v{p+2}, s71, v{x1}
            v_mul_f32 v{p+1}, s70, v{p+1}
            v_mul_f32 v{p+2}, s70, v{p+2}
            v_exp_f32 v{p+1}, v{p+1}
            v_exp_f32 v{p+2}, v{p+2}
            s_nop 0
            v_add_f32 v{p+3}, 2.0, v{p+1}
            v_add_f32 v{p+4}, 2.0, v{p+2}
            v_mul_f32 v{p+1}, v{p+1}, v{p+3}
            v_mul_f32 v{p+2}, v{p+2}, v{p+4}
            v_add_f32 v{p+3}, 2.0, v{p+1}
            v_add_f32 v{p+4}, 2.0, v{p+2}
            v_rcp_f32 v{p+3}, v{p+3}
            v_rcp_f32 v{p+4}, v{p+4}
            v_mul_f32 v{x0}, v{x0}, v{p+1}
            v_mul_f32 v{x1}, v{x1}, v{p+2}
            v_mul_f32 v{x0}, v{x0}, v{p+3}
            v_mul_f32 v{x1}, v{x1}, v{p+4}
            v_cvt_pk_bf16_f32 v{T+i}, v{x0}, v{x1}""")
        A(f"""s_mul_i32 s68, s64, 43
        s_add_u32 s68, s68, s66
        s_lshl_b32 s68, s68, 11
        s_add_u32 s68, s68, {WS_ACT}
        buffer_store_dwordx4 {vr(T,4)}, v4, s[44:47], s68 offen
        buffer_store_dwordx4 {vr(T+4,4)}, v4, s[44:47], s68 offen offset:1024
        s_nop 1""")
        A(f"{ln}:")
    stamp(A, 0, 10)
    if "stamp" in FL:
        A("s_waitcnt vmcnt(0)")
    stamp(A, 0, 11)
    A("s_branch K1_END")

    A("K1_GATE:")
    srd(A, 48, 30, 31, 1024)
    A("""v_and_b32 v2, 7, v1
    v_lshrrev_b32 v3, 3, v1
    v_lshlrev_b32 v4, 7, v2""")
    for q in range(8):
        A(f"buffer_load_dwordx4 {vr(32+4*q,4)}, v4, s[48:51], 0 offen offset:{q*16}")
    A("""v_lshl_add_u32 v5, v3, 10, v4
    s_lshl_b32 s58, s5, 18
    s_lshl_b32 s59, s3, 15
    s_add_u32 s58, s58, s59""")
    for it in range(2):
        A(f"s_add_u32 s59, s58, {it*8192}")
        for q in range(8):
            A(f"buffer_load_dwordx4 {vr(128+it*32+4*q,4)}, v5, s[36:39], s59 offen offset:{q*16}")
    A("s_waitcnt vmcnt(16)")
    for d in range(32):
        A(f"""v_lshlrev_b32 v{64+2*d}, 16, v{32+d}
        v_and_b32 v{65+2*d}, 0xffff0000, v{32+d}""")
    A(f"""s_lshl_b32 s60, s5, 10
    s_lshl_b32 s61, s3, 7
    s_add_u32 s60, s60, s61
    s_add_u32 s60, s60, {WS_G}
    v_lshlrev_b32 v6, 2, v3
    s_mov_b32 s70, 0x{f2u(-LOG2E):08x}""")
    for it in range(4):
        xb = 128 + (it & 1) * 32
        A("""v_mov_b32 v8, 0
        v_mov_b32 v9, 0""")
        A("s_waitcnt vmcnt(8)" if it < 3 else "s_waitcnt vmcnt(0)")
        if it >= 1:
            pass
        for d in range(32):
            A(f"""v_lshlrev_b32 v10, 16, v{xb+d}
            v_and_b32 v11, 0xffff0000, v{xb+d}
            v_mul_f32 v10, v10, v{64+2*d}
            v_mul_f32 v11, v11, v{65+2*d}
            v_cvt_pk_bf16_f32 v12, v10, v11
            v_lshlrev_b32 v10, 16, v12
            v_and_b32 v11, 0xffff0000, v12
            v_add_f32 v8, v8, v10
            v_add_f32 v9, v9, v11""")
        if it + 2 < 4:
            A(f"s_add_u32 s59, s58, {(it+2)*8192}")
            for q in range(8):
                A(f"buffer_load_dwordx4 {vr(xb+4*q,4)}, v5, s[36:39], s59 offen offset:{q*16}")
        A(f"""v_add_f32 v8, v8, v9
        s_nop 1
        v_add_f32_dpp v8, v8, v8 quad_perm:[1,0,3,2] row_mask:0xf bank_mask:0xf
        s_nop 1
        v_add_f32_dpp v8, v8, v8 quad_perm:[2,3,0,1] row_mask:0xf bank_mask:0xf
        s_nop 1
        v_add_f32_dpp v8, v8, v8 row_half_mirror row_mask:0xf bank_mask:0xf
        s_nop 1
        v_cvt_pk_bf16_f32 v9, v8, v8
        v_lshlrev_b32 v8, 16, v9
        v_mul_f32 v8, s70, v8
        v_exp_f32 v8, v8
        s_nop 0
        v_add_f32 v8, 1.0, v8
        v_rcp_f32 v8, v8
        s_nop 0
        v_cvt_pk_bf16_f32 v9, v8, v8
        v_lshlrev_b32 v13, 16, v9
        buffer_store_dword v13, v6, s[44:47], s60 offen offset:{it*32}""")
    A("""K1_END:
    s_endpgm""")


def gen_k2(A):
    QB = 8
    KF = 20
    VF = 36
    P = 52
    NEGM = 68
    SA, SB = 84, 100
    O = 116
    M0, M1 = 132, 133
    A("k2_kernel:")
    A("""s_cmp_ge_u32 s2, 256
    s_cbranch_scc1 K2_END
    s_load_dwordx2 s[32:33], s[0:1], 80
    s_load_dwordx2 s[28:29], s[0:1], 48
    v_lshrrev_b32 v2, 6, v0
    v_and_b32 v1, 63, v0
    s_nop 0
    v_readfirstlane_b32 s3, v2
    s_and_b32 s4, s2, 7
    s_lshl_b32 s4, s4, 2
    s_bfe_u32 s5, s2, 0x20003
    s_add_u32 s4, s4, s5
    s_lshr_b32 s5, s2, 5
    s_waitcnt lgkmcnt(0)""")
    srd(A, 44, 32, 33, WS_SIZE)
    stamp(A, 1, 0)
    A("""v_lshlrev_b32 v2, 4, v1
    v_mov_b32 v3, 0x23000
    v_mov_b32 v4, 0
    ds_write_b64 v3, v[4:5]
    v_mov_b32 v5, 0
    ds_write_b64 v3, v[4:5]
    s_waitcnt lgkmcnt(0)
    s_barrier
    s_cmp_ge_u32 s3, 8
    s_cbranch_scc1 K2_FFN""")
    A(f"""s_lshl_b32 s6, s4, 16
    s_lshl_b32 s7, s3, 13
    s_add_u32 s8, s6, s7
    s_add_u32 s9, s8, {WS_KB}
    s_add_u32 s10, s8, {WS_VT}""")
    A(f"""s_lshl_b32 s12, s5, 3
    s_add_u32 s12, s12, s3
    s_lshl_b32 s13, s12, 10
    s_add_u32 s13, s13, s6
    buffer_load_dwordx4 {vr(QB,4)}, v2, s[44:47], s13 offen
    s_lshl_b32 s14, s4, 8
    s_add_u32 s14, s14, {WS_KN}
    v_lshlrev_b32 v3, 2, v1
    buffer_load_dword v12, v3, s[44:47], s14 offen""")
    A(f"""s_lshl_b32 s7, s3, 11
    s_add_u32 s9, s6, s7
    s_add_u32 s10, s9, {WS_VT}
    s_add_u32 s9, s9, {WS_KB}""")
    for q in range(2):
        A(f"""s_add_u32 m0, s7, {q*1024}
        s_add_u32 s11, s9, {q*1024}
        buffer_load_dwordx4 v2, s[44:47], s11 offen lds
        s_add_u32 m0, s7, {65536+q*1024}
        s_add_u32 s11, s10, {q*1024}
        buffer_load_dwordx4 v2, s[44:47], s11 offen lds""")
    A(f"""s_mul_i32 s7, s3, 6144
    s_add_u32 s7, s7, 16384
    s_add_u32 s9, s6, s7
    s_add_u32 s10, s9, {WS_VT}
    s_add_u32 s9, s9, {WS_KB}""")
    for q in range(6):
        A(f"""s_add_u32 m0, s7, {q*1024}
        s_add_u32 s11, s9, {q*1024}
        buffer_load_dwordx4 v2, s[44:47], s11 offen lds
        s_add_u32 m0, s7, {65536+q*1024}
        s_add_u32 s11, s10, {q*1024}
        buffer_load_dwordx4 v2, s[44:47], s11 offen lds""")

    def sync8(idx, vm):
        l = A.label("SY")
        A(f"""s_waitcnt vmcnt({vm})
        v_mov_b32 v134, 0x23000
        v_mov_b32 v135, 1
        s_mov_b64 exec, 1
        ds_add_u32 v134, v135 offset:{idx*4}
        s_mov_b64 exec, -1
        {l}:
        ds_read_b32 v135, v134 offset:{idx*4}
        s_waitcnt lgkmcnt(0)
        v_readfirstlane_b32 s21, v135
        s_cmp_lt_u32 s21, 8
        s_cbranch_scc1 {l}""")
    A("""v_and_b32 v3, 31, v1
    v_lshrrev_b32 v4, 5, v1
    v_and_b32 v5, 15, v1
    v_lshlrev_b32 v5, 4, v5
    v_lshl_add_u32 v5, v4, 8, v5
    v_add_u32 v13, 0x10000, v5
    v_and_b32 v4, 0x1b, v3
    v_mov_b32 v5, 0x3f803f80
    v_cmp_eq_u32 vcc, 16, v4
    s_nop 1
    v_cndmask_b32 v5, 0, v5, vcc
    s_mov_b32 s30, 0x0000ffff
    s_mov_b32 s31, 0x0000ffff
    s_mov_b32 s23, 0""")
    for r in range(16):
        A(f"v_mov_b32 v{VF+r}, v5")
    A("s_waitcnt vmcnt(16)")
    for i in range(4):
        A(f"""v_lshlrev_b32 v14, 16, v{QB+i}
        v_and_b32 v15, 0xffff0000, v{QB+i}""")
        A("v_mul_f32 v16, v14, v14" if i == 0 else "v_fmac_f32 v16, v14, v14")
        A("v_fmac_f32 v16, v15, v15")
    A("""v_mov_b32 v14, v16
    s_nop 1
    v_permlane32_swap_b32 v16, v14
    s_nop 1
    v_add_f32 v16, v16, v14
    v_max_f32_dpp v12, v12, v12 quad_perm:[1,0,3,2] row_mask:0xf bank_mask:0xf
    s_nop 1
    v_max_f32_dpp v12, v12, v12 quad_perm:[2,3,0,1] row_mask:0xf bank_mask:0xf
    s_nop 1
    v_max_f32_dpp v12, v12, v12 row_half_mirror row_mask:0xf bank_mask:0xf
    s_nop 1
    v_max_f32_dpp v12, v12, v12 row_mirror row_mask:0xf bank_mask:0xf
    s_nop 1
    v_mov_b32 v14, v12
    s_nop 1
    v_permlane16_swap_b32 v12, v14
    s_nop 1
    v_max_f32 v12, v12, v14
    s_nop 1
    v_mov_b32 v14, v12
    s_nop 1
    v_permlane32_swap_b32 v12, v14
    s_nop 1
    v_max_f32 v12, v12, v14
    v_mul_f32 v16, v16, v12
    v_sqrt_f32 v16, v16
    s_nop 0""")
    A(f"v_mul_f32 v{M0}, 0x{f2u(-(1.0+2.0**-7)):08x}, v16")
    sync8(0, 12)
    stamp(A, 1, 1)
    S = [SA, SB]
    A("K2_P2START:")
    for r in range(16):
        A(f"v_mov_b32 v{NEGM+r}, v{M0}")
        A(f"v_mov_b32 v{P+r}, 0")
        A(f"v_mov_b32 v{O+r}, 0")
    A(f"""v_mov_b32 v6, v2
    v_mov_b32 v7, v13
    ds_read_b128 {vr(KF,4)}, v6
    ds_read_b128 {vr(KF+4,4)}, v6 offset:1024
    s_waitcnt lgkmcnt(1)
    v_mfma_f32_32x32x16_bf16 {vr(SA,16)}, {vr(KF,4)}, {vr(QB,4)}, {vr(NEGM,16)}
    s_nop 7
    s_nop 3
    s_mov_b32 s20, 0
    K2_P2:
    s_cmp_eq_u32 s20, 3
    s_cbranch_scc0 K2_NOSYNC
    s_cmp_eq_u32 s23, 0
    s_cbranch_scc0 K2_NOSYNC""")
    sync8(1, 0)
    A("K2_NOSYNC:")
    for t in range(4):
        X, Y = S[t & 1], S[(t + 1) & 1]
        vcur, vprv = VF + (t & 1) * 8, VF + ((t + 1) & 1) * 8
        pcur, pprv = P + (t & 1) * 8, P + ((t + 1) & 1) * 8
        kn = KF + ((t + 1) % 4) * 4
        A(f"""ds_read_b128 {vr(KF+((t+2)%4)*4,4)}, v6 offset:{(t+2)*1024}
        s_mov_b64 exec, s[30:31]
        ds_read_b128 {vr(vcur,4)}, v7 offset:{t*1024}
        ds_read_b128 {vr(vcur+4,4)}, v7 offset:{t*1024+512}
        s_mov_b64 exec, -1
        s_waitcnt lgkmcnt(3)""")
        def mf(x):
            if "nomfma" not in FL:
                A(x)
        def ex(r):
            if "noexp" in FL:
                A(f"v_mov_b32 v{X+r}, v{X+r}")
            elif "noexp2" not in FL:
                A(f"v_exp_f32 v{X+r}, v{X+r}")
        mf(f"v_mfma_f32_32x32x16_bf16 {vr(Y,16)}, {vr(kn,4)}, {vr(QB,4)}, {vr(NEGM,16)}")
        for r in range(0, 5):
            ex(r)
        mf(f"v_mfma_f32_32x32x16_bf16 {vr(O,16)}, {vr(vprv,4)}, {vr(pprv,4)}, {vr(O,16)}")
        for r in range(5, 10):
            ex(r)
        mf(f"v_mfma_f32_32x32x16_bf16 {vr(O,16)}, {vr(vprv+4,4)}, {vr(pprv+4,4)}, {vr(O,16)}")
        for r in range(10, 16):
            ex(r)
        if "nocvt" not in FL:
            for i in range(8):
                A(f"v_cvt_pk_bf16_f32 v{pcur+i}, v{X+2*i}, v{X+2*i+1}")
    A("""v_add_u32 v6, 0x1000, v6
    v_add_u32 v7, 0x1000, v7
    s_add_u32 s20, s20, 1
    s_cmp_lt_u32 s20, 16
    s_cbranch_scc1 K2_P2""")
    A(f"""s_waitcnt lgkmcnt(0)
    s_nop 1
    v_mfma_f32_32x32x16_bf16 {vr(O,16)}, {vr(VF+8,4)}, {vr(P+8,4)}, {vr(O,16)}
    v_mfma_f32_32x32x16_bf16 {vr(O,16)}, {vr(VF+12,4)}, {vr(P+12,4)}, {vr(O,16)}
    s_nop 15
    s_nop 3""")
    A(f"""s_mov_b32 s24, 0x27000000
    v_cmp_nle_f32 vcc, s24, v{O+8}
    s_cmp_eq_u32 s23, 0
    s_cbranch_scc0 K2_FIN
    s_cbranch_vccz K2_FIN
    s_mov_b32 s23, 1""" if "forcefb" not in FL and "nofb" not in FL else "s_branch K2_FIN" if "nofb" in FL else f"""s_cmp_eq_u32 s23, 0
    s_cbranch_scc0 K2_FIN
    s_mov_b32 s23, 1""")
    A(f"""v_mov_b32 v{M0}, 0xff800000
    v_mov_b32 v{M1}, 0xff800000
    v_mov_b32 v6, v2
    ds_read_b128 {vr(KF,4)}, v6
    ds_read_b128 {vr(KF+4,4)}, v6 offset:1024
    s_waitcnt lgkmcnt(1)
    v_mfma_f32_32x32x16_bf16 {vr(SA,16)}, {vr(KF,4)}, {vr(QB,4)}, 0
    s_nop 7
    s_mov_b32 s20, 0
    K2_P1:""")
    for t in range(4):
        X, Y = S[t & 1], S[(t + 1) & 1]
        A(f"""ds_read_b128 {vr(KF+((t+2)%4)*4,4)}, v6 offset:{(t+2)*1024}
        s_waitcnt lgkmcnt(1)
        v_mfma_f32_32x32x16_bf16 {vr(Y,16)}, {vr(KF+((t+1)%4)*4,4)}, {vr(QB,4)}, 0
        s_nop 1""")
        for i in range(4):
            A(f"""v_max3_f32 v{M0}, v{M0}, v{X+4*i}, v{X+4*i+1}
            v_max3_f32 v{M1}, v{M1}, v{X+4*i+2}, v{X+4*i+3}""")
    A(f"""v_add_u32 v6, 0x1000, v6
    s_add_u32 s20, s20, 1
    s_cmp_lt_u32 s20, 16
    s_cbranch_scc1 K2_P1
    v_max_f32 v{M0}, v{M0}, v{M1}
    s_nop 1
    v_mov_b32 v{M1}, v{M0}
    s_nop 1
    v_permlane32_swap_b32 v{M0}, v{M1}
    s_nop 1
    v_max_f32 v{M0}, v{M0}, v{M1}
    v_sub_f32 v{M0}, 0, v{M0}
    s_waitcnt lgkmcnt(0)
    s_nop 7
    s_nop 7
    s_branch K2_P2START
    K2_FIN:""")
    stamp(A, 1, 3)
    A(f"""v_rcp_f32 v{M0}, v{O+8}
    s_nop 0""")
    for r in range(8):
        A(f"v_mul_f32 v{O+r}, v{O+r}, v{M0}")
    for i in range(4):
        A(f"v_cvt_pk_bf16_f32 v{P+i}, v{O+2*i}, v{O+2*i+1}")
    A(f"""s_lshl_b32 s13, s12, 5
    s_add_u32 s13, s13, s4
    s_lshl_b32 s13, s13, 10
    s_add_u32 s13, s13, {WS_OB}
    buffer_store_dwordx4 {vr(P,4)}, v2, s[44:47], s13 offen
    s_branch K2_END""")

    NS = 6
    BF = 16
    AF = 112
    ACC = 120
    A("K2_FFN:")
    srd(A, 40, 28, 29, 1376 * 512 * 2)
    A(f"""s_sub_u32 s3, s3, 8
    s_lshr_b32 s4, s2, 3
    s_and_b32 s5, s2, 7
    s_lshl_b32 s8, s4, 1
    s_mul_i32 s10, s8, 86
    s_lshl_b32 s10, s10, 10
    s_add_u32 s10, s10, {WS_ACT}
    s_add_u32 s11, s10, {86*1024}
    s_mov_b32 s14, 0
    s_lshl_b32 s15, s3, 14
    s_add_u32 s15, s15, 0x20000""")
    A("""v_lshrrev_b32 v4, 2, v1
    v_lshlrev_b32 v4, 10, v4
    v_and_b32 v6, 3, v1
    v_lshl_add_u32 v4, v6, 4, v4
    s_lshl_b32 s9, s5, 7
    s_lshl_b32 s12, s3, 6
    s_add_u32 s9, s9, s12
    v_add_u32 v8, s9, v4""")
    A("""v_bfe_u32 v5, v1, 2, 2
    v_lshrrev_b32 v6, 5, v1
    v_lshl_add_u32 v6, v6, 2, v5
    v_lshlrev_b32 v6, 6, v6
    v_add_u32 v6, s15, v6
    v_bfe_u32 v7, v1, 0, 1
    v_lshl_add_u32 v6, v7, 5, v6
    v_bfe_u32 v7, v1, 4, 1
    v_lshl_add_u32 v6, v7, 4, v6
    v_bfe_u32 v7, v1, 1, 1
    v_lshl_add_u32 v3, v7, 3, v6""")
    for i in range(32):
        A(f"v_mov_b32 v{ACC+i}, 0")

    def issue(stg):
        for q in range(2):
            A(f"""s_add_u32 m0, s15, {stg*2048 + q*1024}
            s_add_u32 s52, s14, {q*16384}
            buffer_load_dwordx4 v8, s[40:43], s52 offen lds""")
        for st in range(2):
            for u in range(2):
                A(f"buffer_load_dwordx4 {vr(BF+stg*16+(u*2+st)*4,4)}, v2, s[44:47], s{10+st} offen offset:{u*1024}")
        A("""s_add_u32 s14, s14, 32768
        s_add_u32 s10, s10, 2048
        s_add_u32 s11, s11, 2048""")

    for stg in range(NS - 1):
        issue(stg)
    A("""s_mov_b32 s53, 0
    K2F_LOOP:""")
    for stg in range(NS):
        issue((stg + NS - 1) % NS)
        A(f"s_waitcnt vmcnt({6*(NS-1)})")
        for u in range(2):
            for rd in range(2):
                A(f"ds_read_b64_tr_b16 {vr(AF+u*4+rd*2,2)}, v3 offset:{stg*2048+(16*u+8*rd)*64}")
        for u in range(2):
            A(f"s_waitcnt lgkmcnt({2 if u == 0 else 0})")
            for st in range(2):
                acc = vr(ACC + st * 16, 16)
                A(f"v_mfma_f32_32x32x16_bf16 {acc}, {vr(AF+u*4,4)}, {vr(BF+stg*16+(u*2+st)*4,4)}, {acc}")
        A("""s_add_u32 s53, s53, 1
        s_cmp_ge_u32 s53, 43
        s_cbranch_scc1 K2F_DONE""")
    A("s_branch K2F_LOOP")
    A(f"""K2F_DONE:
    s_lshl_b32 s10, s2, 2
    s_lshl_b32 s11, s3, 1
    s_add_u32 s10, s10, s11
    s_lshl_b32 s10, s10, 11
    s_add_u32 s10, s10, {WS_PART}
    v_lshlrev_b32 v4, 5, v1
    s_nop 15
    s_nop 3""")
    for st in range(2):
        for i in range(8):
            A(f"v_cvt_pk_bf16_f32 v{BF+st*8+i}, v{ACC+st*16+2*i}, v{ACC+st*16+2*i+1}")
        A(f"""buffer_store_dwordx4 {vr(BF+st*8,4)}, v4, s[44:47], s10 offen offset:{st*2048}
        buffer_store_dwordx4 {vr(BF+st*8+4,4)}, v4, s[44:47], s10 offen offset:{st*2048+16}""")
    A("""K2_END:
    s_endpgm""")


def gen_k3(A):
    BF = 16
    AF = 80
    ACC = 96
    PB = 160
    T = 224
    A("k3_kernel:")
    A("""s_cmp_ge_u32 s2, 256
    s_cbranch_scc1 K3_END
    s_load_dwordx2 s[20:21], s[0:1], 16
    s_load_dwordx2 s[32:33], s[0:1], 80
    s_load_dwordx2 s[34:35], s[0:1], 64
    v_lshrrev_b32 v2, 6, v0
    v_and_b32 v1, 63, v0
    s_nop 0
    v_readfirstlane_b32 s3, v2
    s_lshr_b32 s4, s2, 3
    s_and_b32 s5, s2, 7
    s_waitcnt lgkmcnt(0)""")
    srd(A, 44, 32, 33, WS_SIZE)
    srd(A, 48, 34, 35, 2048 * 512 * 2)
    srd(A, 40, 20, 21, 512 * 512 * 2)
    stamp(A, 2, 0)
    A(f"""s_lshl_b32 s8, s4, 6
    s_lshl_b32 s13, s3, 3
    s_add_u32 s10, s8, s13
    s_lshl_b32 s10, s10, 10
    s_add_u32 s10, s10, {WS_OB}
    s_add_u32 s11, s10, 32768
    s_lshl_b32 s14, s3, 17
    s_lshl_b32 s15, s3, 14""")
    A("""v_lshrrev_b32 v4, 3, v1
    v_lshlrev_b32 v4, 10, v4
    v_bfe_u32 v5, v1, 4, 1
    v_lshlrev_b32 v5, 2, v5
    v_and_b32 v6, 7, v1
    v_xor_b32 v5, v5, v6
    v_lshl_add_u32 v4, v5, 4, v4
    s_lshl_b32 s9, s5, 7
    v_add_u32 v2, s9, v4""")
    A("""v_bfe_u32 v5, v1, 2, 2
    v_lshrrev_b32 v6, 5, v1
    v_lshl_add_u32 v6, v6, 2, v5
    v_lshlrev_b32 v6, 7, v6
    v_add_u32 v6, s15, v6
    v_bfe_u32 v7, v1, 0, 1
    v_lshl_add_u32 v6, v7, 5, v6
    v_bfe_u32 v7, v1, 4, 1
    v_lshl_add_u32 v6, v7, 4, v6
    v_bfe_u32 v7, v1, 1, 1
    v_lshl_add_u32 v6, v7, 3, v6
    v_bfe_u32 v7, v1, 3, 1
    v_lshl_add_u32 v3, v7, 6, v6
    v_xor_b32 v7, 1, v7
    v_lshl_add_u32 v4, v7, 6, v6
    v_lshlrev_b32 v5, 4, v1""")

    for stg in range(4):
        for q in range(4):
            A(f"""s_add_u32 m0, s15, {stg*4096 + q*1024}
            s_add_u32 s52, s14, {stg*32768 + q*8192}
            buffer_load_dwordx4 v2, s[40:43], s52 offen lds""")
        for st in range(2):
            for u in range(2):
                A(f"buffer_load_dwordx4 {vr(BF+stg*16+(u*2+st)*4,4)}, v5, s[44:47], s{10+st} offen offset:{u*1024}")
        A("""s_add_u32 s10, s10, 2048
        s_add_u32 s11, s11, 2048""")
    A(f"""s_lshl_b32 s16, s2, 2
    s_add_u32 s16, s16, s3
    s_lshl_b32 s16, s16, 11
    s_add_u32 s16, s16, {WS_PART}
    v_lshlrev_b32 v6, 5, v1
    buffer_load_dwordx4 {vr(PB,4)}, v6, s[44:47], s16 offen
    buffer_load_dwordx4 {vr(PB+4,4)}, v6, s[44:47], s16 offen offset:16""")
    A(f"""s_and_b32 s8, s3, 1
    s_lshr_b32 s9, s3, 1
    s_lshl_b32 s10, s4, 6
    s_lshl_b32 s11, s8, 5
    s_add_u32 s10, s10, s11
    v_and_b32 v7, 31, v1
    v_add_u32 v7, s10, v7
    v_lshlrev_b32 v8, 2, v7
    s_mov_b32 s12, {WS_G}
    buffer_load_dword v9, v8, s[44:47], s12 offen""")
    for i in range(64):
        A(f"v_mov_b32 v{ACC+i}, 0")
    stamp(A, 2, 1)
    for stg in range(4):
        A(f"s_waitcnt vmcnt({3 + 8*(3-stg)})")
        for u in range(2):
            for nt in range(2):
                for rd in range(2):
                    A(f"ds_read_b64_tr_b16 {vr(AF+(u*2+nt)*4+rd*2,2)}, v{3+nt} offset:{stg*4096+(16*u+8*rd)*128}")
        for u in range(2):
            A(f"s_waitcnt lgkmcnt({4 if u == 0 else 0})")
            for nt in range(2):
                for st in range(2):
                    acc = vr(ACC + (nt * 2 + st) * 16, 16)
                    A(f"v_mfma_f32_32x32x16_bf16 {acc}, {vr(AF+(u*2+nt)*4,4)}, {vr(BF+stg*16+(u*2+st)*4,4)}, {acc}")
    A("""s_nop 15
    s_nop 3""")
    stamp(A, 2, 2)
    A("""v_lshlrev_b32 v6, 4, v1
    v_add_u32 v6, s15, v6""")
    for tl in range(4):
        for q in range(4):
            A(f"ds_write_b128 v6, {vr(ACC+tl*16+q*4,4)} offset:{tl*4096+q*1024}")
    A("""s_waitcnt lgkmcnt(0)
    s_barrier
    s_lshl_b32 s13, s3, 12
    v_lshlrev_b32 v6, 4, v1
    v_add_u32 v6, s13, v6""")
    for w in range(4):
        for q in range(4):
            A(f"ds_read_b128 {vr(ACC+w*16+q*4,4)}, v6 offset:{w*16384+q*1024}")
    A("""v_lshlrev_b32 v8, 10, v7
    v_lshrrev_b32 v10, 5, v1
    v_lshl_add_u32 v8, v10, 5, v8
    s_lshl_b32 s14, s5, 7
    s_lshl_b32 s15, s9, 6
    s_add_u32 s14, s14, s15
    s_waitcnt vmcnt(0) lgkmcnt(0)
    v_sub_f32 v10, 1.0, v9
    v_cvt_pk_bf16_f32 v11, v10, v10
    v_lshlrev_b32 v10, 16, v11""")
    for i in range(8):
        a0, a1 = ACC + 2 * i, ACC + 2 * i + 1
        b0, b1 = PB + 16 + 2 * i, PB + 16 + 2 * i + 1
        A(f"""v_add_f32 v{a0}, v{a0}, v{a0+16}
        v_add_f32 v{a1}, v{a1}, v{a1+16}
        v_add_f32 v{a0+32}, v{a0+32}, v{a0+48}
        v_add_f32 v{a1+32}, v{a1+32}, v{a1+48}
        v_add_f32 v{a0}, v{a0}, v{a0+32}
        v_add_f32 v{a1}, v{a1}, v{a1+32}
        v_lshlrev_b32 v{b0}, 16, v{PB+i}
        v_and_b32 v{b1}, 0xffff0000, v{PB+i}""")
        bf16_round_pair(A, a0, a1, T + 16)
        A(f"""v_mul_f32 v{a0}, v{a0}, v9
        v_mul_f32 v{a1}, v{a1}, v9
        v_mul_f32 v{b0}, v{b0}, v10
        v_mul_f32 v{b1}, v{b1}, v10""")
        bf16_round_pair(A, a0, a1, T + 16)
        bf16_round_pair(A, b0, b1, T + 17)
        A(f"""v_add_f32 v{a0}, v{a0}, v{b0}
        v_add_f32 v{a1}, v{a1}, v{b1}
        v_cvt_pk_bf16_f32 v{T+i}, v{a0}, v{a1}""")
    stamp(A, 2, 3)
    A(f"""buffer_store_dwordx4 {vr(T,4)}, v8, s[48:51], s14 offen
    buffer_store_dwordx4 {vr(T+4,4)}, v8, s[48:51], s14 offen offset:16
    K3_END:
    s_endpgm""")


HEADER = """; Kernarg layout for this problem (88 bytes, ptrs only, base s[0:1]):
; @launch kernel=k1_kernel grid=(256,1,1) block=(512,1,1) lds=135168
; @launch kernel=k2_kernel grid=(256,1,1) block=(640,1,1) lds=163840
; @launch kernel=k3_kernel grid=(256,1,1) block=(256,1,1) lds=65536
.amdgcn_target "amdgcn-amd-amdhsa--gfx950"
.text
"""


def kd(name, vgpr, sgpr=102):
    acc = (vgpr + 3) // 4 * 4
    return f""".amdhsa_kernel {name}
  .amdhsa_next_free_vgpr {vgpr}
  .amdhsa_next_free_sgpr {sgpr}
  .amdhsa_accum_offset {acc}
  .amdhsa_group_segment_fixed_size 0
  .amdhsa_kernarg_size 88
  .amdhsa_user_sgpr_count 2
  .amdhsa_user_sgpr_kernarg_segment_ptr 1
  .amdhsa_system_sgpr_workgroup_id_x 1
.end_amdhsa_kernel
"""


def main():
    out = HEADER
    for nm, fn in (("k1_kernel", gen_k1), ("k2_kernel", gen_k2), ("k3_kernel", gen_k3)):
        A = Asm()
        A.lab = {"k1_kernel": 1000, "k2_kernel": 2000, "k3_kernel": 3000}[nm]
        fn(A)
        out += f".globl {nm}\n.p2align 8\n.type {nm},@function\n" + A.text()
    out += '.section .rodata,"a"\n'
    for nm, v in (("k1_kernel", 192), ("k2_kernel", 152), ("k3_kernel", 244)):
        if "stamp" in FL:
            v = 256 if nm != "k2_kernel" else 168
        out += ".p2align 6\n" + kd(nm, v)
    path = sys.argv[1] if len(sys.argv) > 1 else f"cdna_kernels/{NAME}.s"
    open(path, "w").write(out)


if __name__ == "__main__":
    main()
```

```python
import sys, struct, os
FL = set(os.environ.get("FL", "").split(","))
STFLAG = os.environ.get("STFLAG", "")

NAME = "gated_mix__mha_block__dense_activation_mish__prompt"

WS_QB = 0x000000
WS_QH = 0x200000
WS_QL = 0x400000
WS_KB = 0x600000
WS_VT = 0x800000
WS_ACT = 0xA00000
WS_OB = 0x1000000
WS_G = 0x1200000
WS_KN = 0x1210000
WS_PART = 0x1400000
WS_SIZE = 0x2800000

LOG2E = 1.4426950408889634


def f2u(x):
    return struct.unpack("<I", struct.pack("<f", x))[0]


class Asm:
    def __init__(self):
        self.lines = []
        self.lab = 0

    def __call__(self, s):
        for l in s.strip("\n").split("\n"):
            l = l.strip()
            if l:
                if "offset:" in l:
                    off = int(l.split("offset:")[1].split()[0], 0)
                    assert off < (4096 if l.startswith("buffer") else 65536), l
                if l.startswith("buffer_store") and STFLAG:
                    l = l + " " + STFLAG
                self.lines.append("    " + l if not l.endswith(":") else l)

    def label(self, p="L"):
        self.lab += 1
        return f"{p}_{self.lab}"

    def text(self):
        return "\n".join(self.lines) + "\n"


def vr(a, n):
    return f"v[{a}:{a+n-1}]"


def srd(A, d, lo, hi, size):
    A(f"""s_mov_b32 s{d}, s{lo}
    s_and_b32 s{d+1}, s{hi}, 0xffff
    s_mov_b32 s{d+2}, {size}
    s_mov_b32 s{d+3}, 0x20000""")


STAMP_BASE = 0x2400000


def stamp(A, kern, idx):
    if "stamp" not in FL:
        return
    r = 166 if kern == 1 else 254
    A(f"""s_memtime s[92:93]
    s_lshl_b32 s94, s2, 4
    s_add_u32 s94, s94, s3
    s_lshl_b32 s94, s94, 6
    s_add_u32 s94, s94, {STAMP_BASE + kern*0x40000 + idx*4}
    s_waitcnt lgkmcnt(0)
    v_mov_b32 v{r+1}, s92
    v_mov_b32 v{r}, 0
    buffer_store_dword v{r+1}, v{r}, s[44:47], s94 offen
    s_memrealtime s[92:93]
    s_waitcnt lgkmcnt(0)
    v_mov_b32 v{r+1}, s92
    s_add_u32 s94, s94, 0x100000
    buffer_store_dword v{r+1}, v{r}, s[44:47], s94 offen""")


def bf16_round_pair(A, a, b, tmp):
    A(f"""v_cvt_pk_bf16_f32 v{tmp}, v{a}, v{b}
    v_lshlrev_b32 v{a}, 16, v{tmp}
    v_and_b32 v{b}, 0xffff0000, v{tmp}""")


def gen_k1(A):
    BUF = 45056
    A("k1_kernel:")
    A("""s_cmp_ge_u32 s2, 256
    s_cbranch_scc1 K1_END
    s_load_dwordx16 s[16:31], s[0:1], 0
    s_load_dwordx2 s[32:33], s[0:1], 80
    v_lshrrev_b32 v2, 6, v0
    v_and_b32 v1, 63, v0
    s_nop 0
    v_readfirstlane_b32 s3, v2
    s_lshr_b32 s4, s2, 3
    s_and_b32 s5, s2, 7
    s_waitcnt lgkmcnt(0)""")
    srd(A, 36, 16, 17, 2048 * 512 * 2)
    srd(A, 44, 32, 33, WS_SIZE)
    stamp(A, 0, 0)
    A("""s_cmp_ge_u32 s2, 248
    s_cbranch_scc1 %s""" % ("K1_END" if "nogate" in FL else "K1_GATE"))
    srd(A, 48, 26, 27, 1376 * 2)
    A("""s_mov_b32 s42, %d
    s_mov_b32 s6, 2752
    s_cmp_lt_u32 s4, 16
    s_cselect_b32 s40, s18, s24
    s_cselect_b32 s41, s19, s25
    s_cselect_b32 s42, %d, s42
    s_mov_b32 s43, 0x20000
    s_cselect_b32 s6, 3072, s6
    s_cselect_b32 s8, 0, 16
    s_and_b32 s41, s41, 0xffff
    s_sub_u32 s8, s4, s8
    s_mul_i32 s7, s8, 96
    s_mul_i32 s9, s8, 3""" % (512 * 1376 * 2, 512 * 1536 * 2))
    A("""v_and_b32 v2, 31, v1
    v_lshrrev_b32 v3, 5, v1""")
    A("""v_lshrrev_b32 v4, 3, v1
    v_lshlrev_b32 v4, 10, v4
    v_and_b32 v5, 7, v1
    v_lshrrev_b32 v6, 4, v1
    v_xor_b32 v7, v5, v6
    v_lshl_add_u32 v10, v7, 4, v4
    v_add_u32 v6, 4, v6
    v_xor_b32 v7, v5, v6
    v_lshl_add_u32 v11, v7, 4, v4""")
    A("""s_add_u32 s10, s3, 8
    s_cmp_lt_u32 s3, 4
    s_cselect_b32 s10, s10, s3
    s_lshl_b32 s11, s7, 1
    s_mov_b32 s12, 0x15555556
    s_lshl_b32 s13, s3, 6
    s_lshl_b32 s14, s10, 6""")
    for qq in range(2):
        A(f"""v_add_u32 v4, s{13+qq}, v1
        v_mul_hi_u32 v5, v4, s12
        v_mul_u32_u24 v6, 12, v5
        v_sub_u32 v6, v4, v6
        v_mul_lo_u32 v5, v5, s6
        v_lshl_add_u32 v5, v6, 4, v5
        v_add_u32 v{12+qq}, s11, v5""")
    A("""s_lshl_b32 s58, s5, 18
    s_lshl_b32 s59, s3, 15
    s_add_u32 s58, s58, s59
    s_lshl_b32 s60, s3, 12
    s_lshl_b32 s61, s3, 10
    s_add_u32 s61, s61, 32768
    s_lshl_b32 s57, s10, 10
    s_add_u32 s57, s57, 32768
    s_lshl_b32 s62, s6, 6""")

    def dma(c, b):
        for q in range(4):
            A(f"""s_add_u32 m0, s60, {b*BUF + q*1024}
            s_add_u32 s63, s58, {q*8192 + c*128}
            buffer_load_dwordx4 v{10 + (q&1)}, s[36:39], s63 offen lds""")
        A(f"s_mul_i32 s63, s62, {c}")
        for qq in range(2):
            A(f"""s_add_u32 m0, s{61 if qq == 0 else 57}, {b*BUF}
            s_nop 0
            buffer_load_dwordx4 v{12+qq}, s[40:43], s63 offen lds""")

    A("""v_lshlrev_b32 v4, 3, v3
    v_add_u32 v4, s11, v4""")
    for t in range(3):
        for q in range(4):
            A(f"buffer_load_dwordx2 v[{32+t*8+q*2}:{32+t*8+q*2+1}], v4, s[48:51], 0 offen offset:{t*64+q*16}")
    dma(0, 0)
    dma(1, 1)
    A("""v_lshrrev_b32 v4, 1, v2
    v_and_b32 v4, 7, v4
    v_lshlrev_b32 v5, 7, v2
    v_add_u32 v5, s60, v5""")
    for u in range(4):
        A(f"""v_add_u32 v6, {2*u}, v3
        v_xor_b32 v6, v6, v4
        v_lshl_add_u32 v{16+u}, v6, 4, v5""")
    for b in (1, 2):
        for u in range(4):
            A(f"v_add_u32 v{16+4*b+u}, {b*BUF}, v{16+u}")
    A("""v_bfe_u32 v4, v1, 2, 2
    v_lshl_add_u32 v4, v3, 3, v4
    v_mul_u32_u24 v4, 192, v4
    v_bfe_u32 v5, v1, 4, 1
    v_lshl_add_u32 v4, v5, 5, v4
    v_and_b32 v5, 3, v1
    v_lshl_add_u32 v4, v5, 3, v4""")
    for b in range(3):
        A(f"v_add_u32 v{28+b}, {32768 + b*BUF}, v4")

    XF = 56
    WF = 64
    ACC = 88
    T = 136
    A("""s_cmp_ge_u32 s4, 16
    s_cbranch_scc1 K1_INITB""")
    for i in range(48):
        A(f"v_mov_b32 v{ACC+i}, 0")
    A("""s_branch K1_INITD
    K1_INITB:
    s_waitcnt vmcnt(12)""")
    for t in range(3):
        for i in range(8):
            bq = 32 + t * 8 + (i >> 1) * 2 + (i & 1)
            A(f"""v_lshlrev_b32 v{ACC+t*16+2*i}, 16, v{bq}
            v_and_b32 v{ACC+t*16+2*i+1}, 0xffff0000, v{bq}""")
    A("K1_INITD:")

    def reads(b, u, st):
        A(f"ds_read_b128 {vr(XF+st*4,4)}, v{16+4*b+u}")
        for t in range(3):
            for rd in range(2):
                A(f"ds_read_b64_tr_b16 {vr(WF+st*12+t*4+rd*2,2)}, v{28+b} offset:{(16*u+4*rd)*192+64*t}")

    def mainloop(variant):
        for c in range(8):
            b = c % 3
            if c < 7:
                A("s_waitcnt vmcnt(6)")
            else:
                A("s_waitcnt vmcnt(0)")
            A("s_barrier")
            stamp(A, 0, 1 + c)
            reads(b, 0, 0)
            if c + 2 < 8:
                dma(c + 2, (c + 2) % 3)
            for u in range(4):
                st = u & 1
                if u < 3:
                    reads(b, u + 1, st ^ 1)
                    A("s_waitcnt lgkmcnt(7)")
                else:
                    A("s_waitcnt lgkmcnt(0)")
                for t in range(3):
                    acc = vr(ACC + t * 16, 16)
                    xf = vr(XF + st * 4, 4)
                    wf = vr(WF + st * 12 + t * 4, 4)
                    if variant[t] == "T":
                        A(f"v_mfma_f32_32x32x16_bf16 {acc}, {wf}, {xf}, {acc}")
                    else:
                        A(f"v_mfma_f32_32x32x16_bf16 {acc}, {xf}, {wf}, {acc}")
        A("s_nop 15")
        A("s_nop 3")

    A("""s_cmp_eq_u32 s4, 10
    s_cbranch_scc1 K1_TTN
    s_cmp_lt_u32 s4, 11
    s_cbranch_scc1 K1_TTT
    s_cmp_lt_u32 s4, 16
    s_cbranch_scc1 K1_NNN
    K1_TTT:""")
    mainloop("TTT")
    A("s_branch K1_EPI")
    A("K1_TTN:")
    mainloop("TTN")
    A("s_branch K1_EPI")
    A("K1_NNN:")
    mainloop("NNN")
    A("K1_EPI:")
    stamp(A, 0, 9)

    A(f"""v_lshlrev_b32 v4, 4, v1
    v_bfe_u32 v5, v1, 4, 1
    v_lshlrev_b32 v5, 16, v5
    v_lshl_add_u32 v5, v3, 8, v5
    v_and_b32 v6, 15, v1
    v_lshl_add_u32 v5, v6, 4, v5""")
    A("""s_lshl_b32 s64, s5, 3
    s_add_u32 s64, s64, s3
    s_lshl_b32 s65, s64, 10""")
    CQ = f2u(0.25 * LOG2E)
    for t in range(3):
        lq, lk, lv, lf, ln = (A.label("K1E") for _ in range(5))
        a = ACC + t * 16
        A(f"""s_add_u32 s66, s9, {t}
        s_cmp_ge_u32 s4, 16
        s_cbranch_scc1 {lf}
        s_and_b32 s67, s66, 15
        s_lshl_b32 s67, s67, 17
        s_add_u32 s68, s65, s67
        s_cmp_lt_u32 s66, 16
        s_cbranch_scc1 {lq}
        s_cmp_lt_u32 s66, 32
        s_cbranch_scc1 {lk}
        {lv}:""")
        for i in range(8):
            A(f"v_cvt_pk_bf16_f32 v{T+i}, v{a+2*i}, v{a+2*i+1}")
        A(f"""s_add_u32 s68, s68, {WS_VT}
        buffer_store_dwordx4 {vr(T,4)}, v5, s[44:47], s68 offen
        buffer_store_dwordx4 {vr(T+4,4)}, v5, s[44:47], s68 offen offset:512
        s_nop 1
        s_branch {ln}""")
        A(f"{lk}:")
        for i in range(8):
            A(f"v_cvt_pk_bf16_f32 v{T+i}, v{a+2*i}, v{a+2*i+1}")
        A(f"""s_lshl_b32 s71, s64, 2
        s_add_u32 s68, s68, {WS_KB}
        s_add_u32 s69, s68, 65536
        buffer_store_dwordx4 {vr(T,4)}, v4, s[44:47], s68 offen
        buffer_store_dwordx4 {vr(T+4,4)}, v4, s[44:47], s69 offen""")
        for hd in range(2):
            n = T + 8 + hd
            for i in range(4):
                A(f"""v_lshlrev_b32 v{T+12}, 16, v{T+hd*4+i}
                v_and_b32 v{T+13}, 0xffff0000, v{T+hd*4+i}""")
                if i == 0:
                    A(f"v_mul_f32 v{n}, v{T+12}, v{T+12}")
                else:
                    A(f"v_fmac_f32 v{n}, v{T+12}, v{T+12}")
                A(f"v_fmac_f32 v{n}, v{T+13}, v{T+13}")
        for hd in range(2):
            n = T + 8 + hd
            A(f"""v_mov_b32 v{T+12}, v{n}
            s_nop 1
            v_permlane32_swap_b32 v{n}, v{T+12}
            s_nop 1
            v_add_f32 v{n}, v{n}, v{T+12}
            s_nop 1
            v_max_f32_dpp v{n}, v{n}, v{n} quad_perm:[1,0,3,2] row_mask:0xf bank_mask:0xf
            s_nop 1
            v_max_f32_dpp v{n}, v{n}, v{n} quad_perm:[2,3,0,1] row_mask:0xf bank_mask:0xf
            s_nop 1
            v_max_f32_dpp v{n}, v{n}, v{n} row_half_mirror row_mask:0xf bank_mask:0xf
            s_nop 1
            v_max_f32_dpp v{n}, v{n}, v{n} row_mirror row_mask:0xf bank_mask:0xf
            s_nop 1
            v_mov_b32 v{T+12}, v{n}
            s_nop 1
            v_permlane16_swap_b32 v{n}, v{T+12}
            s_nop 1
            v_max_f32 v{n}, v{n}, v{T+12}""")
        A(f"""s_lshr_b32 s69, s67, 8
        s_add_u32 s71, s71, s69
        s_add_u32 s71, s71, {WS_KN}
        v_mov_b32 v{T+12}, 0
        buffer_store_dword v{T+8}, v{T+12}, s[44:47], s71 offen
        buffer_store_dword v{T+9}, v{T+12}, s[44:47], s71 offen offset:256
        s_nop 1
        s_branch {ln}""")
        A(f"{lq}:")
        A(f"s_mov_b32 s70, 0x{CQ:08x}")
        for i in range(8):
            x0, x1 = a + 2 * i, a + 2 * i + 1
            A(f"""v_cvt_pk_bf16_f32 v{T+i}, v{x0}, v{x1}
            v_lshlrev_b32 v{x0}, 16, v{T+i}
            v_and_b32 v{x1}, 0xffff0000, v{T+i}
            v_mul_f32 v{x0}, s70, v{x0}
            v_mul_f32 v{x1}, s70, v{x1}
            v_cvt_pk_bf16_f32 v{T+i}, v{x0}, v{x1}""")
        A(f"""s_add_u32 s69, s68, 65536
        buffer_store_dwordx4 {vr(T,4)}, v4, s[44:47], s68 offen
        buffer_store_dwordx4 {vr(T+4,4)}, v4, s[44:47], s69 offen
        s_nop 1
        s_branch {ln}""")
        A(f"""{lf}:
        s_cmp_ge_u32 s66, 43
        s_cbranch_scc1 {ln}
        s_mov_b32 s70, 0x{f2u(LOG2E):08x}
        s_mov_b32 s71, 0x41a00000""")
        for i in range(8):
            x0, x1 = a + 2 * i, a + 2 * i + 1
            p = T + 24
            bf16_round_pair(A, x0, x1, p)
            A(f"""v_min_f32 v{p+1}, s71, v{x0}
            v_min_f32 v{p+2}, s71, v{x1}
            v_mul_f32 v{p+1}, s70, v{p+1}
            v_mul_f32 v{p+2}, s70, v{p+2}
            v_exp_f32 v{p+1}, v{p+1}
            v_exp_f32 v{p+2}, v{p+2}
            s_nop 0
            v_add_f32 v{p+3}, 2.0, v{p+1}
            v_add_f32 v{p+4}, 2.0, v{p+2}
            v_mul_f32 v{p+1}, v{p+1}, v{p+3}
            v_mul_f32 v{p+2}, v{p+2}, v{p+4}
            v_add_f32 v{p+3}, 2.0, v{p+1}
            v_add_f32 v{p+4}, 2.0, v{p+2}
            v_rcp_f32 v{p+3}, v{p+3}
            v_rcp_f32 v{p+4}, v{p+4}
            v_mul_f32 v{x0}, v{x0}, v{p+1}
            v_mul_f32 v{x1}, v{x1}, v{p+2}
            v_mul_f32 v{x0}, v{x0}, v{p+3}
            v_mul_f32 v{x1}, v{x1}, v{p+4}
            v_cvt_pk_bf16_f32 v{T+i}, v{x0}, v{x1}""")
        A(f"""s_mul_i32 s68, s64, 43
        s_add_u32 s68, s68, s66
        s_lshl_b32 s68, s68, 11
        s_add_u32 s68, s68, {WS_ACT}
        buffer_store_dwordx4 {vr(T,4)}, v4, s[44:47], s68 offen
        buffer_store_dwordx4 {vr(T+4,4)}, v4, s[44:47], s68 offen offset:1024
        s_nop 1""")
        A(f"{ln}:")
    stamp(A, 0, 10)
    if "stamp" in FL:
        A("s_waitcnt vmcnt(0)")
    stamp(A, 0, 11)
    A("s_branch K1_END")

    A("K1_GATE:")
    srd(A, 48, 30, 31, 1024)
    A("""v_and_b32 v2, 7, v1
    v_lshrrev_b32 v3, 3, v1
    v_lshlrev_b32 v4, 7, v2""")
    for q in range(8):
        A(f"buffer_load_dwordx4 {vr(32+4*q,4)}, v4, s[48:51], 0 offen offset:{q*16}")
    A("""v_lshl_add_u32 v5, v3, 10, v4
    s_lshl_b32 s58, s5, 18
    s_lshl_b32 s59, s3, 15
    s_add_u32 s58, s58, s59""")
    for it in range(2):
        A(f"s_add_u32 s59, s58, {it*8192}")
        for q in range(8):
            A(f"buffer_load_dwordx4 {vr(128+it*32+4*q,4)}, v5, s[36:39], s59 offen offset:{q*16}")
    A("s_waitcnt vmcnt(16)")
    for d in range(32):
        A(f"""v_lshlrev_b32 v{64+2*d}, 16, v{32+d}
        v_and_b32 v{65+2*d}, 0xffff0000, v{32+d}""")
    A(f"""s_lshl_b32 s60, s5, 10
    s_lshl_b32 s61, s3, 7
    s_add_u32 s60, s60, s61
    s_add_u32 s60, s60, {WS_G}
    v_lshlrev_b32 v6, 2, v3
    s_mov_b32 s70, 0x{f2u(-LOG2E):08x}""")
    for it in range(4):
        xb = 128 + (it & 1) * 32
        A("""v_mov_b32 v8, 0
        v_mov_b32 v9, 0""")
        A("s_waitcnt vmcnt(8)" if it < 3 else "s_waitcnt vmcnt(0)")
        if it >= 1:
            pass
        for d in range(32):
            A(f"""v_lshlrev_b32 v10, 16, v{xb+d}
            v_and_b32 v11, 0xffff0000, v{xb+d}
            v_mul_f32 v10, v10, v{64+2*d}
            v_mul_f32 v11, v11, v{65+2*d}
            v_cvt_pk_bf16_f32 v12, v10, v11
            v_lshlrev_b32 v10, 16, v12
            v_and_b32 v11, 0xffff0000, v12
            v_add_f32 v8, v8, v10
            v_add_f32 v9, v9, v11""")
        if it + 2 < 4:
            A(f"s_add_u32 s59, s58, {(it+2)*8192}")
            for q in range(8):
                A(f"buffer_load_dwordx4 {vr(xb+4*q,4)}, v5, s[36:39], s59 offen offset:{q*16}")
        A(f"""v_add_f32 v8, v8, v9
        s_nop 1
        v_add_f32_dpp v8, v8, v8 quad_perm:[1,0,3,2] row_mask:0xf bank_mask:0xf
        s_nop 1
        v_add_f32_dpp v8, v8, v8 quad_perm:[2,3,0,1] row_mask:0xf bank_mask:0xf
        s_nop 1
        v_add_f32_dpp v8, v8, v8 row_half_mirror row_mask:0xf bank_mask:0xf
        s_nop 1
        v_cvt_pk_bf16_f32 v9, v8, v8
        v_lshlrev_b32 v8, 16, v9
        v_mul_f32 v8, s70, v8
        v_exp_f32 v8, v8
        s_nop 0
        v_add_f32 v8, 1.0, v8
        v_rcp_f32 v8, v8
        s_nop 0
        v_cvt_pk_bf16_f32 v9, v8, v8
        v_lshlrev_b32 v13, 16, v9
        buffer_store_dword v13, v6, s[44:47], s60 offen offset:{it*32}""")
    A("""K1_END:
    s_endpgm""")


def gen_k2(A):
    QB = 8
    KF = 20
    VF = 36
    P = 52
    NEGM = 68
    SA, SB = 84, 100
    O = 116
    M0, M1 = 132, 133
    A("k2_kernel:")
    A("""s_cmp_ge_u32 s2, 256
    s_cbranch_scc1 K2_END
    s_load_dwordx2 s[32:33], s[0:1], 80
    s_load_dwordx2 s[28:29], s[0:1], 48
    s_load_dwordx2 s[34:35], s[0:1], 16
    s_load_dwordx4 s[36:39], s[0:1], 64
    v_lshrrev_b32 v2, 6, v0
    v_and_b32 v1, 63, v0
    s_nop 0
    v_readfirstlane_b32 s3, v2
    s_and_b32 s4, s2, 7
    s_lshl_b32 s4, s4, 2
    s_bfe_u32 s5, s2, 0x20003
    s_add_u32 s4, s4, s5
    s_lshr_b32 s5, s2, 5
    s_waitcnt lgkmcnt(0)""")
    srd(A, 44, 32, 33, WS_SIZE)
    stamp(A, 1, 0)
    A("""v_lshlrev_b32 v2, 4, v1
    v_mov_b32 v3, 0x23000
    v_mov_b32 v4, 0
    v_mov_b32 v5, 0
    ds_write_b64 v3, v[4:5]
    ds_write_b64 v3, v[4:5] offset:8
    ds_write_b64 v3, v[4:5] offset:16
    s_lshl_b32 s26, s5, 2
    s_lshr_b32 s27, s4, 3
    s_add_u32 s26, s26, s27
    s_and_b32 s27, s4, 7
    s_waitcnt lgkmcnt(0)
    s_barrier
    s_cmp_ge_u32 s3, 8
    s_cbranch_scc1 K2_FFN""")
    A(f"""s_lshl_b32 s6, s4, 16
    s_lshl_b32 s7, s3, 13
    s_add_u32 s8, s6, s7
    s_add_u32 s9, s8, {WS_KB}
    s_add_u32 s10, s8, {WS_VT}""")
    A(f"""s_lshl_b32 s12, s5, 3
    s_add_u32 s12, s12, s3
    s_lshl_b32 s13, s12, 10
    s_add_u32 s13, s13, s6
    buffer_load_dwordx4 {vr(QB,4)}, v2, s[44:47], s13 offen
    s_lshl_b32 s14, s4, 8
    s_add_u32 s14, s14, {WS_KN}
    v_lshlrev_b32 v3, 2, v1
    buffer_load_dword v12, v3, s[44:47], s14 offen""")
    A(f"""s_lshl_b32 s7, s3, 11
    s_add_u32 s9, s6, s7
    s_add_u32 s10, s9, {WS_VT}
    s_add_u32 s9, s9, {WS_KB}""")
    for q in range(2):
        A(f"""s_add_u32 m0, s7, {q*1024}
        s_add_u32 s11, s9, {q*1024}
        buffer_load_dwordx4 v2, s[44:47], s11 offen lds
        s_add_u32 m0, s7, {65536+q*1024}
        s_add_u32 s11, s10, {q*1024}
        buffer_load_dwordx4 v2, s[44:47], s11 offen lds""")
    A(f"""s_mul_i32 s7, s3, 6144
    s_add_u32 s7, s7, 16384
    s_add_u32 s9, s6, s7
    s_add_u32 s10, s9, {WS_VT}
    s_add_u32 s9, s9, {WS_KB}""")
    for q in range(6):
        A(f"""s_add_u32 m0, s7, {q*1024}
        s_add_u32 s11, s9, {q*1024}
        buffer_load_dwordx4 v2, s[44:47], s11 offen lds
        s_add_u32 m0, s7, {65536+q*1024}
        s_add_u32 s11, s10, {q*1024}
        buffer_load_dwordx4 v2, s[44:47], s11 offen lds""")

    def sync8(idx, vm):
        l = A.label("SY")
        A(f"""s_waitcnt vmcnt({vm})
        v_mov_b32 v134, 0x23000
        v_mov_b32 v135, 1
        s_mov_b64 exec, 1
        ds_add_u32 v134, v135 offset:{idx*4}
        s_mov_b64 exec, -1
        {l}:
        ds_read_b32 v135, v134 offset:{idx*4}
        s_waitcnt lgkmcnt(0)
        v_readfirstlane_b32 s21, v135
        s_cmp_lt_u32 s21, 8
        s_cbranch_scc1 {l}""")
    A("""v_and_b32 v3, 31, v1
    v_lshrrev_b32 v4, 5, v1
    v_and_b32 v5, 15, v1
    v_lshlrev_b32 v5, 4, v5
    v_lshl_add_u32 v5, v4, 8, v5
    v_add_u32 v13, 0x10000, v5
    v_and_b32 v4, 0x1b, v3
    v_mov_b32 v5, 0x3f803f80
    v_cmp_eq_u32 vcc, 16, v4
    s_nop 1
    v_cndmask_b32 v5, 0, v5, vcc
    s_mov_b32 s30, 0x0000ffff
    s_mov_b32 s31, 0x0000ffff
    s_mov_b32 s23, 0""")
    for r in range(16):
        A(f"v_mov_b32 v{VF+r}, v5")
    A("s_waitcnt vmcnt(16)")
    for i in range(4):
        A(f"""v_lshlrev_b32 v14, 16, v{QB+i}
        v_and_b32 v15, 0xffff0000, v{QB+i}""")
        A("v_mul_f32 v16, v14, v14" if i == 0 else "v_fmac_f32 v16, v14, v14")
        A("v_fmac_f32 v16, v15, v15")
    A("""v_mov_b32 v14, v16
    s_nop 1
    v_permlane32_swap_b32 v16, v14
    s_nop 1
    v_add_f32 v16, v16, v14
    v_max_f32_dpp v12, v12, v12 quad_perm:[1,0,3,2] row_mask:0xf bank_mask:0xf
    s_nop 1
    v_max_f32_dpp v12, v12, v12 quad_perm:[2,3,0,1] row_mask:0xf bank_mask:0xf
    s_nop 1
    v_max_f32_dpp v12, v12, v12 row_half_mirror row_mask:0xf bank_mask:0xf
    s_nop 1
    v_max_f32_dpp v12, v12, v12 row_mirror row_mask:0xf bank_mask:0xf
    s_nop 1
    v_mov_b32 v14, v12
    s_nop 1
    v_permlane16_swap_b32 v12, v14
    s_nop 1
    v_max_f32 v12, v12, v14
    s_nop 1
    v_mov_b32 v14, v12
    s_nop 1
    v_permlane32_swap_b32 v12, v14
    s_nop 1
    v_max_f32 v12, v12, v14
    v_mul_f32 v16, v16, v12
    v_sqrt_f32 v16, v16
    s_nop 0""")
    A(f"v_mul_f32 v{M0}, 0x{f2u(-(1.0+2.0**-7)):08x}, v16")
    sync8(0, 12)
    stamp(A, 1, 1)
    S = [SA, SB]
    A("K2_P2START:")
    for r in range(16):
        A(f"v_mov_b32 v{NEGM+r}, v{M0}")
        A(f"v_mov_b32 v{P+r}, 0")
        A(f"v_mov_b32 v{O+r}, 0")
    A(f"""v_mov_b32 v6, v2
    v_mov_b32 v7, v13
    ds_read_b128 {vr(KF,4)}, v6
    ds_read_b128 {vr(KF+4,4)}, v6 offset:1024
    s_waitcnt lgkmcnt(1)
    v_mfma_f32_32x32x16_bf16 {vr(SA,16)}, {vr(KF,4)}, {vr(QB,4)}, {vr(NEGM,16)}
    s_nop 7
    s_nop 3
    s_mov_b32 s20, 0
    K2_P2:
    s_cmp_eq_u32 s20, 3
    s_cbranch_scc0 K2_NOSYNC
    s_cmp_eq_u32 s23, 0
    s_cbranch_scc0 K2_NOSYNC""")
    sync8(1, 0)
    A("K2_NOSYNC:")
    for t in range(4):
        X, Y = S[t & 1], S[(t + 1) & 1]
        vcur, vprv = VF + (t & 1) * 8, VF + ((t + 1) & 1) * 8
        pcur, pprv = P + (t & 1) * 8, P + ((t + 1) & 1) * 8
        kn = KF + ((t + 1) % 4) * 4
        A(f"""ds_read_b128 {vr(KF+((t+2)%4)*4,4)}, v6 offset:{(t+2)*1024}
        s_mov_b64 exec, s[30:31]
        ds_read_b128 {vr(vcur,4)}, v7 offset:{t*1024}
        ds_read_b128 {vr(vcur+4,4)}, v7 offset:{t*1024+512}
        s_mov_b64 exec, -1
        s_waitcnt lgkmcnt(3)""")
        def mf(x):
            if "nomfma" not in FL:
                A(x)
        def ex(r):
            if "noexp" in FL:
                A(f"v_mov_b32 v{X+r}, v{X+r}")
            elif "noexp2" not in FL:
                A(f"v_exp_f32 v{X+r}, v{X+r}")
        mf(f"v_mfma_f32_32x32x16_bf16 {vr(Y,16)}, {vr(kn,4)}, {vr(QB,4)}, {vr(NEGM,16)}")
        for r in range(0, 5):
            ex(r)
        mf(f"v_mfma_f32_32x32x16_bf16 {vr(O,16)}, {vr(vprv,4)}, {vr(pprv,4)}, {vr(O,16)}")
        for r in range(5, 10):
            ex(r)
        mf(f"v_mfma_f32_32x32x16_bf16 {vr(O,16)}, {vr(vprv+4,4)}, {vr(pprv+4,4)}, {vr(O,16)}")
        for r in range(10, 16):
            ex(r)
        if "nocvt" not in FL:
            for i in range(8):
                A(f"v_cvt_pk_bf16_f32 v{pcur+i}, v{X+2*i}, v{X+2*i+1}")
    A("""v_add_u32 v6, 0x1000, v6
    v_add_u32 v7, 0x1000, v7
    s_add_u32 s20, s20, 1
    s_cmp_lt_u32 s20, 16
    s_cbranch_scc1 K2_P2""")
    A(f"""s_waitcnt lgkmcnt(0)
    s_nop 1
    v_mfma_f32_32x32x16_bf16 {vr(O,16)}, {vr(VF+8,4)}, {vr(P+8,4)}, {vr(O,16)}
    v_mfma_f32_32x32x16_bf16 {vr(O,16)}, {vr(VF+12,4)}, {vr(P+12,4)}, {vr(O,16)}
    s_nop 15
    s_nop 3""")
    A(f"""s_mov_b32 s24, 0x27000000
    v_cmp_nle_f32 vcc, s24, v{O+8}
    s_cmp_eq_u32 s23, 0
    s_cbranch_scc0 K2_FIN
    s_cbranch_vccz K2_FIN
    s_mov_b32 s23, 1""" if "forcefb" not in FL and "nofb" not in FL else "s_branch K2_FIN" if "nofb" in FL else f"""s_cmp_eq_u32 s23, 0
    s_cbranch_scc0 K2_FIN
    s_mov_b32 s23, 1""")
    A(f"""v_mov_b32 v{M0}, 0xff800000
    v_mov_b32 v{M1}, 0xff800000
    v_mov_b32 v6, v2
    ds_read_b128 {vr(KF,4)}, v6
    ds_read_b128 {vr(KF+4,4)}, v6 offset:1024
    s_waitcnt lgkmcnt(1)
    v_mfma_f32_32x32x16_bf16 {vr(SA,16)}, {vr(KF,4)}, {vr(QB,4)}, 0
    s_nop 7
    s_mov_b32 s20, 0
    K2_P1:""")
    for t in range(4):
        X, Y = S[t & 1], S[(t + 1) & 1]
        A(f"""ds_read_b128 {vr(KF+((t+2)%4)*4,4)}, v6 offset:{(t+2)*1024}
        s_waitcnt lgkmcnt(1)
        v_mfma_f32_32x32x16_bf16 {vr(Y,16)}, {vr(KF+((t+1)%4)*4,4)}, {vr(QB,4)}, 0
        s_nop 1""")
        for i in range(4):
            A(f"""v_max3_f32 v{M0}, v{M0}, v{X+4*i}, v{X+4*i+1}
            v_max3_f32 v{M1}, v{M1}, v{X+4*i+2}, v{X+4*i+3}""")
    A(f"""v_add_u32 v6, 0x1000, v6
    s_add_u32 s20, s20, 1
    s_cmp_lt_u32 s20, 16
    s_cbranch_scc1 K2_P1
    v_max_f32 v{M0}, v{M0}, v{M1}
    s_nop 1
    v_mov_b32 v{M1}, v{M0}
    s_nop 1
    v_permlane32_swap_b32 v{M0}, v{M1}
    s_nop 1
    v_max_f32 v{M0}, v{M0}, v{M1}
    v_sub_f32 v{M0}, 0, v{M0}
    s_waitcnt lgkmcnt(0)
    s_nop 7
    s_nop 7
    s_branch K2_P2START
    K2_FIN:""")
    stamp(A, 1, 3)
    A(f"""v_rcp_f32 v{M0}, v{O+8}
    s_nop 0""")
    for r in range(8):
        A(f"v_mul_f32 v{O+r}, v{O+r}, v{M0}")
    for i in range(4):
        A(f"v_cvt_pk_bf16_f32 v{P+i}, v{O+2*i}, v{O+2*i+1}")
    A(f"""s_lshl_b32 s13, s12, 5
    s_add_u32 s13, s13, s4
    s_lshl_b32 s13, s13, 10
    s_add_u32 s13, s13, {WS_OB}
    buffer_store_dwordx4 {vr(P,4)}, v2, s[44:47], s13 offen""")
    BFT, AFT, ACT_, TT = 20, 52, 68, 140
    srd(A, 48, 34, 35, 512 * 512 * 2)
    srd(A, 52, 38, 39, 256)
    srd(A, 56, 36, 37, 2048 * 512 * 2)
    sync8(2, 0)
    A("""s_lshl_b32 s60, s5, 5
    v_mov_b32 v10, s60
    v_mov_b32 v11, 1
    s_cmp_eq_u32 s3, 0
    s_cbranch_scc0 K2T_NOARR
    s_mov_b64 exec, 1
    buffer_atomic_add v11, v10, s[52:55], 0 offen sc1
    s_mov_b64 exec, -1
    K2T_NOARR:""")
    A("""v_lshrrev_b32 v4, 3, v1
    v_lshlrev_b32 v4, 10, v4
    v_bfe_u32 v5, v1, 4, 1
    v_lshlrev_b32 v5, 2, v5
    v_and_b32 v6, 7, v1
    v_xor_b32 v5, v5, v6
    v_lshl_add_u32 v4, v5, 4, v4
    s_lshl_b32 s9, s27, 7
    v_add_u32 v8, s9, v4
    s_lshl_b32 s14, s3, 16
    s_lshl_b32 s15, s3, 14""")
    for q in range(8):
        A(f"""s_add_u32 m0, s15, {q*1024}
        s_add_u32 s16, s14, {q*8192}
        buffer_load_dwordx4 v8, s[48:51], s16 offen lds""")
    A("""v_bfe_u32 v5, v1, 2, 2
    v_lshrrev_b32 v6, 5, v1
    v_lshl_add_u32 v6, v6, 2, v5
    v_lshlrev_b32 v6, 7, v6
    v_add_u32 v6, s15, v6
    v_bfe_u32 v7, v1, 0, 1
    v_lshl_add_u32 v6, v7, 5, v6
    v_bfe_u32 v7, v1, 4, 1
    v_lshl_add_u32 v6, v7, 4, v6
    v_bfe_u32 v7, v1, 1, 1
    v_lshl_add_u32 v6, v7, 3, v6
    v_bfe_u32 v7, v1, 3, 1
    v_lshl_add_u32 v3, v7, 6, v6
    v_xor_b32 v7, 1, v7
    v_lshl_add_u32 v4, v7, 6, v6""")
    A(f"""s_and_b32 s61, s3, 1
    s_bfe_u32 s62, s3, 0x10001
    s_lshl_b32 s63, s26, 6
    s_lshl_b32 s64, s61, 5
    s_add_u32 s63, s63, s64
    v_and_b32 v7, 31, v1
    v_add_u32 v7, s63, v7
    v_lshlrev_b32 v9, 2, v7
    s_mov_b32 s64, {WS_G}
    buffer_load_dword v12, v9, s[44:47], s64 offen""")
    for i in range(64):
        A(f"v_mov_b32 v{ACT_+i}, 0")
    A("""v_mov_b32 v134, 0x23000
    s_cmp_eq_u32 s3, 0
    s_cbranch_scc0 K2T_WAITL
    K2T_POLL:
    buffer_load_dword v11, v10, s[52:55], 0 offen sc1
    s_waitcnt vmcnt(0)
    v_readfirstlane_b32 s21, v11
    s_cmp_ge_u32 s21, 32
    s_cbranch_scc1 K2T_GO
    s_sleep 2
    s_branch K2T_POLL
    K2T_GO:
    v_mov_b32 v135, 1
    ds_write_b32 v134, v135 offset:16
    s_branch K2T_RDY
    K2T_WAITL:
    ds_read_b32 v135, v134 offset:16
    s_waitcnt lgkmcnt(0)
    v_readfirstlane_b32 s21, v135
    s_cmp_eq_u32 s21, 0
    s_cbranch_scc0 K2T_RDY
    s_sleep 1
    s_branch K2T_WAITL
    K2T_RDY:""")
    A(f"""s_lshl_b32 s16, s26, 6
    s_lshl_b32 s17, s3, 2
    s_add_u32 s16, s16, s17
    s_lshl_b32 s16, s16, 10
    s_add_u32 s16, s16, {WS_OB}
    s_add_u32 s17, s16, 32768""")
    for hd in range(4):
        for st in range(2):
            A(f"buffer_load_dwordx4 {vr(BFT+(hd*2+st)*4,4)}, v2, s[44:47], s{16+st} offen offset:{hd*1024} sc1")
    for c in range(2):
        if c == 0:
            A("s_waitcnt vmcnt(4)")
        else:
            A("s_waitcnt vmcnt(0)")
        for u in range(2):
            for nt in range(2):
                for rd in range(2):
                    A(f"ds_read_b64_tr_b16 {vr(AFT+(u*2+nt)*4+rd*2,2)}, v{3+nt} offset:{c*4096+(16*u+8*rd)*128}")
        for u in range(2):
            A(f"s_waitcnt lgkmcnt({4 if u == 0 else 0})")
            for nt in range(2):
                for st in range(2):
                    acc = vr(ACT_ + (nt * 2 + st) * 16, 16)
                    A(f"v_mfma_f32_32x32x16_bf16 {acc}, {vr(AFT+(u*2+nt)*4,4)}, {vr(BFT+((c*2+u)*2+st)*4,4)}, {acc}")
    A("""s_nop 15
    s_nop 3
    v_add_u32 v6, s15, v2""")
    for tl in range(4):
        for q in range(4):
            A(f"ds_write_b128 v6, {vr(ACT_+tl*16+q*4,4)} offset:{tl*4096+q*1024}")
    A("s_waitcnt lgkmcnt(0)")
    sync8(3, 0)
    A("""s_cmp_ge_u32 s3, 4
    s_cbranch_scc1 K2_END
    K2T_WAITF:
    ds_read_b32 v135, v134 offset:20
    s_waitcnt lgkmcnt(0)
    v_readfirstlane_b32 s21, v135
    s_cmp_ge_u32 s21, 2
    s_cbranch_scc1 K2T_FOK
    s_sleep 1
    s_branch K2T_WAITF
    K2T_FOK:
    s_lshl_b32 s13, s3, 12
    v_add_u32 v6, s13, v2
    s_lshl_b32 s14, s62, 14
    s_lshl_b32 s15, s61, 11
    s_add_u32 s14, s14, s15
    s_add_u32 s14, s14, 0x20000
    v_lshlrev_b32 v5, 5, v1
    v_add_u32 v5, s14, v5""")
    A(f"""ds_read_b128 {vr(TT+16,4)}, v5
    ds_read_b128 {vr(TT+20,4)}, v5 offset:16""")
    for half in range(2):
        for w in range(4):
            ww = half * 4 + w
            for q in range(4):
                if ww * 16384 + q * 1024 < 65536:
                    A(f"ds_read_b128 {vr(ACT_+w*16+q*4,4)}, v6 offset:{ww*16384+q*1024}")
                else:
                    A(f"ds_read_b128 {vr(ACT_+w*16+q*4,4)}, v13 offset:{ww*16384+q*1024-65536}")
        if half == 0:
            A("v_add_u32 v13, 0x10000, v6")
        A("s_waitcnt lgkmcnt(0)")
        for r in range(16):
            A(f"""v_add_f32 v{ACT_+r}, v{ACT_+r}, v{ACT_+16+r}
            v_add_f32 v{ACT_+32+r}, v{ACT_+32+r}, v{ACT_+48+r}""")
            if half == 0:
                A(f"v_add_f32 v{20+r}, v{ACT_+r}, v{ACT_+32+r}")
            else:
                A(f"""v_add_f32 v{ACT_+r}, v{ACT_+r}, v{ACT_+32+r}
                v_add_f32 v{ACT_+r}, v{ACT_+r}, v{20+r}""")
    A("""v_lshlrev_b32 v8, 10, v7
    v_lshrrev_b32 v10, 5, v1
    v_lshl_add_u32 v8, v10, 5, v8
    s_lshl_b32 s14, s27, 7
    s_lshl_b32 s15, s62, 6
    s_add_u32 s14, s14, s15
    v_sub_f32 v10, 1.0, v12
    v_cvt_pk_bf16_f32 v11, v10, v10
    v_lshlrev_b32 v10, 16, v11""")
    for i in range(8):
        a0, a1 = ACT_ + 2 * i, ACT_ + 2 * i + 1
        b0, b1 = 36 + 2 * i, 36 + 2 * i + 1
        A(f"""v_lshlrev_b32 v{b0}, 16, v{TT+16+i}
        v_and_b32 v{b1}, 0xffff0000, v{TT+16+i}""")
        bf16_round_pair(A, a0, a1, TT + 8)
        A(f"""v_mul_f32 v{a0}, v{a0}, v12
        v_mul_f32 v{a1}, v{a1}, v12
        v_mul_f32 v{b0}, v{b0}, v10
        v_mul_f32 v{b1}, v{b1}, v10""")
        bf16_round_pair(A, a0, a1, TT + 8)
        bf16_round_pair(A, b0, b1, TT + 9)
        A(f"""v_add_f32 v{a0}, v{a0}, v{b0}
        v_add_f32 v{a1}, v{a1}, v{b1}
        v_cvt_pk_bf16_f32 v{TT+i}, v{a0}, v{a1}""")
    A(f"""buffer_store_dwordx4 {vr(TT,4)}, v8, s[56:59], s14 offen
    buffer_store_dwordx4 {vr(TT+4,4)}, v8, s[56:59], s14 offen offset:16
    s_branch K2_END""")

    NS = 6
    BF = 16
    AF = 112
    ACC = 120
    A("K2_FFN:")
    srd(A, 40, 28, 29, 1376 * 512 * 2)
    A(f"""s_sub_u32 s3, s3, 8
    s_mov_b32 s4, s26
    s_mov_b32 s5, s27
    s_lshl_b32 s8, s4, 1
    s_mul_i32 s10, s8, 86
    s_lshl_b32 s10, s10, 10
    s_add_u32 s10, s10, {WS_ACT}
    s_add_u32 s11, s10, {86*1024}
    s_mov_b32 s14, 0
    s_lshl_b32 s15, s3, 14
    s_add_u32 s15, s15, 0x20000""")
    A("""v_lshrrev_b32 v4, 2, v1
    v_lshlrev_b32 v4, 10, v4
    v_and_b32 v6, 3, v1
    v_lshl_add_u32 v4, v6, 4, v4
    s_lshl_b32 s9, s5, 7
    s_lshl_b32 s12, s3, 6
    s_add_u32 s9, s9, s12
    v_add_u32 v8, s9, v4""")
    A("""v_bfe_u32 v5, v1, 2, 2
    v_lshrrev_b32 v6, 5, v1
    v_lshl_add_u32 v6, v6, 2, v5
    v_lshlrev_b32 v6, 6, v6
    v_add_u32 v6, s15, v6
    v_bfe_u32 v7, v1, 0, 1
    v_lshl_add_u32 v6, v7, 5, v6
    v_bfe_u32 v7, v1, 4, 1
    v_lshl_add_u32 v6, v7, 4, v6
    v_bfe_u32 v7, v1, 1, 1
    v_lshl_add_u32 v3, v7, 3, v6""")
    for i in range(32):
        A(f"v_mov_b32 v{ACC+i}, 0")

    def issue(stg):
        for q in range(2):
            A(f"""s_add_u32 m0, s15, {stg*2048 + q*1024}
            s_add_u32 s52, s14, {q*16384}
            buffer_load_dwordx4 v8, s[40:43], s52 offen lds""")
        for st in range(2):
            for u in range(2):
                A(f"buffer_load_dwordx4 {vr(BF+stg*16+(u*2+st)*4,4)}, v2, s[44:47], s{10+st} offen offset:{u*1024}")
        A("""s_add_u32 s14, s14, 32768
        s_add_u32 s10, s10, 2048
        s_add_u32 s11, s11, 2048""")

    for stg in range(NS - 1):
        issue(stg)
    A("""s_mov_b32 s53, 0
    K2F_LOOP:""")
    for stg in range(NS):
        issue((stg + NS - 1) % NS)
        A(f"s_waitcnt vmcnt({6*(NS-1)})")
        for u in range(2):
            for rd in range(2):
                A(f"ds_read_b64_tr_b16 {vr(AF+u*4+rd*2,2)}, v3 offset:{stg*2048+(16*u+8*rd)*64}")
        for u in range(2):
            A(f"s_waitcnt lgkmcnt({2 if u == 0 else 0})")
            for st in range(2):
                acc = vr(ACC + st * 16, 16)
                A(f"v_mfma_f32_32x32x16_bf16 {acc}, {vr(AF+u*4,4)}, {vr(BF+stg*16+(u*2+st)*4,4)}, {acc}")
        A("""s_add_u32 s53, s53, 1
        s_cmp_ge_u32 s53, 43
        s_cbranch_scc1 K2F_DONE""")
    A("s_branch K2F_LOOP")
    A(f"""K2F_DONE:
    s_waitcnt vmcnt(0)
    v_lshlrev_b32 v4, 5, v1
    v_add_u32 v4, s15, v4
    s_nop 15
    s_nop 3""")
    for st in range(2):
        for i in range(8):
            A(f"v_cvt_pk_bf16_f32 v{BF+st*8+i}, v{ACC+st*16+2*i}, v{ACC+st*16+2*i+1}")
        A(f"""ds_write_b128 v4, {vr(BF+st*8,4)} offset:{st*2048}
        ds_write_b128 v4, {vr(BF+st*8+4,4)} offset:{st*2048+16}""")
    A("""s_waitcnt lgkmcnt(0)
    v_mov_b32 v5, 0x23000
    v_mov_b32 v6, 1
    s_mov_b64 exec, 1
    ds_add_u32 v5, v6 offset:20
    s_mov_b64 exec, -1
    s_waitcnt lgkmcnt(0)
    K2_END:
    s_endpgm""")


def gen_k3(A):
    BF = 16
    AF = 80
    ACC = 96
    PB = 160
    T = 224
    A("k3_kernel:")
    A("""s_cmp_ge_u32 s2, 256
    s_cbranch_scc1 K3_END
    s_load_dwordx2 s[20:21], s[0:1], 16
    s_load_dwordx2 s[32:33], s[0:1], 80
    s_load_dwordx2 s[34:35], s[0:1], 64
    v_lshrrev_b32 v2, 6, v0
    v_and_b32 v1, 63, v0
    s_nop 0
    v_readfirstlane_b32 s3, v2
    s_lshr_b32 s4, s2, 3
    s_and_b32 s5, s2, 7
    s_waitcnt lgkmcnt(0)""")
    srd(A, 44, 32, 33, WS_SIZE)
    srd(A, 48, 34, 35, 2048 * 512 * 2)
    srd(A, 40, 20, 21, 512 * 512 * 2)
    stamp(A, 2, 0)
    A(f"""s_lshl_b32 s8, s4, 6
    s_lshl_b32 s13, s3, 3
    s_add_u32 s10, s8, s13
    s_lshl_b32 s10, s10, 10
    s_add_u32 s10, s10, {WS_OB}
    s_add_u32 s11, s10, 32768
    s_lshl_b32 s14, s3, 17
    s_lshl_b32 s15, s3, 14""")
    A("""v_lshrrev_b32 v4, 3, v1
    v_lshlrev_b32 v4, 10, v4
    v_bfe_u32 v5, v1, 4, 1
    v_lshlrev_b32 v5, 2, v5
    v_and_b32 v6, 7, v1
    v_xor_b32 v5, v5, v6
    v_lshl_add_u32 v4, v5, 4, v4
    s_lshl_b32 s9, s5, 7
    v_add_u32 v2, s9, v4""")
    A("""v_bfe_u32 v5, v1, 2, 2
    v_lshrrev_b32 v6, 5, v1
    v_lshl_add_u32 v6, v6, 2, v5
    v_lshlrev_b32 v6, 7, v6
    v_add_u32 v6, s15, v6
    v_bfe_u32 v7, v1, 0, 1
    v_lshl_add_u32 v6, v7, 5, v6
    v_bfe_u32 v7, v1, 4, 1
    v_lshl_add_u32 v6, v7, 4, v6
    v_bfe_u32 v7, v1, 1, 1
    v_lshl_add_u32 v6, v7, 3, v6
    v_bfe_u32 v7, v1, 3, 1
    v_lshl_add_u32 v3, v7, 6, v6
    v_xor_b32 v7, 1, v7
    v_lshl_add_u32 v4, v7, 6, v6
    v_lshlrev_b32 v5, 4, v1""")

    for stg in range(4):
        for q in range(4):
            A(f"""s_add_u32 m0, s15, {stg*4096 + q*1024}
            s_add_u32 s52, s14, {stg*32768 + q*8192}
            buffer_load_dwordx4 v2, s[40:43], s52 offen lds""")
        for st in range(2):
            for u in range(2):
                A(f"buffer_load_dwordx4 {vr(BF+stg*16+(u*2+st)*4,4)}, v5, s[44:47], s{10+st} offen offset:{u*1024}")
        A("""s_add_u32 s10, s10, 2048
        s_add_u32 s11, s11, 2048""")
    A(f"""s_lshl_b32 s16, s2, 2
    s_add_u32 s16, s16, s3
    s_lshl_b32 s16, s16, 11
    s_add_u32 s16, s16, {WS_PART}
    v_lshlrev_b32 v6, 5, v1
    buffer_load_dwordx4 {vr(PB,4)}, v6, s[44:47], s16 offen
    buffer_load_dwordx4 {vr(PB+4,4)}, v6, s[44:47], s16 offen offset:16""")
    A(f"""s_and_b32 s8, s3, 1
    s_lshr_b32 s9, s3, 1
    s_lshl_b32 s10, s4, 6
    s_lshl_b32 s11, s8, 5
    s_add_u32 s10, s10, s11
    v_and_b32 v7, 31, v1
    v_add_u32 v7, s10, v7
    v_lshlrev_b32 v8, 2, v7
    s_mov_b32 s12, {WS_G}
    buffer_load_dword v9, v8, s[44:47], s12 offen""")
    for i in range(64):
        A(f"v_mov_b32 v{ACC+i}, 0")
    stamp(A, 2, 1)
    for stg in range(4):
        A(f"s_waitcnt vmcnt({3 + 8*(3-stg)})")
        for u in range(2):
            for nt in range(2):
                for rd in range(2):
                    A(f"ds_read_b64_tr_b16 {vr(AF+(u*2+nt)*4+rd*2,2)}, v{3+nt} offset:{stg*4096+(16*u+8*rd)*128}")
        for u in range(2):
            A(f"s_waitcnt lgkmcnt({4 if u == 0 else 0})")
            for nt in range(2):
                for st in range(2):
                    acc = vr(ACC + (nt * 2 + st) * 16, 16)
                    A(f"v_mfma_f32_32x32x16_bf16 {acc}, {vr(AF+(u*2+nt)*4,4)}, {vr(BF+stg*16+(u*2+st)*4,4)}, {acc}")
    A("""s_nop 15
    s_nop 3""")
    stamp(A, 2, 2)
    A("""v_lshlrev_b32 v6, 4, v1
    v_add_u32 v6, s15, v6""")
    for tl in range(4):
        for q in range(4):
            A(f"ds_write_b128 v6, {vr(ACC+tl*16+q*4,4)} offset:{tl*4096+q*1024}")
    A("""s_waitcnt lgkmcnt(0)
    s_barrier
    s_lshl_b32 s13, s3, 12
    v_lshlrev_b32 v6, 4, v1
    v_add_u32 v6, s13, v6""")
    for w in range(4):
        for q in range(4):
            A(f"ds_read_b128 {vr(ACC+w*16+q*4,4)}, v6 offset:{w*16384+q*1024}")
    A("""v_lshlrev_b32 v8, 10, v7
    v_lshrrev_b32 v10, 5, v1
    v_lshl_add_u32 v8, v10, 5, v8
    s_lshl_b32 s14, s5, 7
    s_lshl_b32 s15, s9, 6
    s_add_u32 s14, s14, s15
    s_waitcnt vmcnt(0) lgkmcnt(0)
    v_sub_f32 v10, 1.0, v9
    v_cvt_pk_bf16_f32 v11, v10, v10
    v_lshlrev_b32 v10, 16, v11""")
    for i in range(8):
        a0, a1 = ACC + 2 * i, ACC + 2 * i + 1
        b0, b1 = PB + 16 + 2 * i, PB + 16 + 2 * i + 1
        A(f"""v_add_f32 v{a0}, v{a0}, v{a0+16}
        v_add_f32 v{a1}, v{a1}, v{a1+16}
        v_add_f32 v{a0+32}, v{a0+32}, v{a0+48}
        v_add_f32 v{a1+32}, v{a1+32}, v{a1+48}
        v_add_f32 v{a0}, v{a0}, v{a0+32}
        v_add_f32 v{a1}, v{a1}, v{a1+32}
        v_lshlrev_b32 v{b0}, 16, v{PB+i}
        v_and_b32 v{b1}, 0xffff0000, v{PB+i}""")
        bf16_round_pair(A, a0, a1, T + 16)
        A(f"""v_mul_f32 v{a0}, v{a0}, v9
        v_mul_f32 v{a1}, v{a1}, v9
        v_mul_f32 v{b0}, v{b0}, v10
        v_mul_f32 v{b1}, v{b1}, v10""")
        bf16_round_pair(A, a0, a1, T + 16)
        bf16_round_pair(A, b0, b1, T + 17)
        A(f"""v_add_f32 v{a0}, v{a0}, v{b0}
        v_add_f32 v{a1}, v{a1}, v{b1}
        v_cvt_pk_bf16_f32 v{T+i}, v{a0}, v{a1}""")
    stamp(A, 2, 3)
    A(f"""buffer_store_dwordx4 {vr(T,4)}, v8, s[48:51], s14 offen
    buffer_store_dwordx4 {vr(T+4,4)}, v8, s[48:51], s14 offen offset:16
    K3_END:
    s_endpgm""")


HEADER = """; Kernarg layout for this problem (88 bytes, ptrs only, base s[0:1]):
; @launch kernel=k1_kernel grid=(256,1,1) block=(512,1,1) lds=135168
; @launch kernel=k2_kernel grid=(256,1,1) block=(640,1,1) lds=163840
.amdgcn_target "amdgcn-amd-amdhsa--gfx950"
.text
"""


def kd(name, vgpr, sgpr=102):
    acc = (vgpr + 3) // 4 * 4
    return f""".amdhsa_kernel {name}
  .amdhsa_next_free_vgpr {vgpr}
  .amdhsa_next_free_sgpr {sgpr}
  .amdhsa_accum_offset {acc}
  .amdhsa_group_segment_fixed_size 0
  .amdhsa_kernarg_size 88
  .amdhsa_user_sgpr_count 2
  .amdhsa_user_sgpr_kernarg_segment_ptr 1
  .amdhsa_system_sgpr_workgroup_id_x 1
.end_amdhsa_kernel
"""


def main():
    out = HEADER
    for nm, fn in (("k1_kernel", gen_k1), ("k2_kernel", gen_k2)):
        A = Asm()
        A.lab = {"k1_kernel": 1000, "k2_kernel": 2000, "k3_kernel": 3000}[nm]
        fn(A)
        out += f".globl {nm}\n.p2align 8\n.type {nm},@function\n" + A.text()
    out += '.section .rodata,"a"\n'
    for nm, v in (("k1_kernel", 192), ("k2_kernel", 168)):
        if "stamp" in FL:
            v = 256 if nm != "k2_kernel" else 168
        out += ".p2align 6\n" + kd(nm, v)
    path = sys.argv[1] if len(sys.argv) > 1 else f"cdna_kernels/{NAME}.s"
    open(path, "w").write(out)


if __name__ == "__main__":
    main()
```

```python
import sys, struct, os
FL = set(os.environ.get("FL", "").split(","))
STFLAG = os.environ.get("STFLAG", "")

NAME = "gated_mix__mha_block__dense_activation_mish__prompt"

WS_QB = 0x000000
WS_QH = 0x200000
WS_QL = 0x400000
WS_KB = 0x600000
WS_VT = 0x800000
WS_ACT = 0xA00000
WS_OB = 0x1000000
WS_G = 0x1200000
WS_KN = 0x1210000
WS_PART = 0x1400000
WS_SIZE = 0x2800000

LOG2E = 1.4426950408889634


def f2u(x):
    return struct.unpack("<I", struct.pack("<f", x))[0]


class Asm:
    def __init__(self):
        self.lines = []
        self.lab = 0

    def __call__(self, s):
        for l in s.strip("\n").split("\n"):
            l = l.strip()
            if l:
                if "offset:" in l:
                    off = int(l.split("offset:")[1].split()[0], 0)
                    assert off < (4096 if l.startswith("buffer") else 65536), l
                if l.startswith("buffer_store") and STFLAG:
                    l = l + " " + STFLAG
                self.lines.append("    " + l if not l.endswith(":") else l)

    def label(self, p="L"):
        self.lab += 1
        return f"{p}_{self.lab}"

    def text(self):
        return "\n".join(self.lines) + "\n"


def vr(a, n):
    return f"v[{a}:{a+n-1}]"


def srd(A, d, lo, hi, size):
    A(f"""s_mov_b32 s{d}, s{lo}
    s_and_b32 s{d+1}, s{hi}, 0xffff
    s_mov_b32 s{d+2}, {size}
    s_mov_b32 s{d+3}, 0x20000""")


STAMP_BASE = 0x2400000


def stamp(A, kern, idx):
    if "stamp" not in FL:
        return
    r = 166 if kern == 1 else 254
    A(f"""s_memtime s[92:93]
    s_lshl_b32 s94, s2, 4
    s_add_u32 s94, s94, s3
    s_lshl_b32 s94, s94, 6
    s_add_u32 s94, s94, {STAMP_BASE + kern*0x40000 + idx*4}
    s_waitcnt lgkmcnt(0)
    v_mov_b32 v{r+1}, s92
    v_mov_b32 v{r}, 0
    buffer_store_dword v{r+1}, v{r}, s[44:47], s94 offen
    s_memrealtime s[92:93]
    s_waitcnt lgkmcnt(0)
    v_mov_b32 v{r+1}, s92
    s_add_u32 s94, s94, 0x100000
    buffer_store_dword v{r+1}, v{r}, s[44:47], s94 offen""")


def bf16_round_pair(A, a, b, tmp):
    A(f"""v_cvt_pk_bf16_f32 v{tmp}, v{a}, v{b}
    v_lshlrev_b32 v{a}, 16, v{tmp}
    v_and_b32 v{b}, 0xffff0000, v{tmp}""")


def gen_k1(A):
    BUF = 45056
    A("k1_kernel:")
    A("""s_cmp_ge_u32 s2, 256
    s_cbranch_scc1 K1_END
    s_load_dwordx16 s[16:31], s[0:1], 0
    s_load_dwordx2 s[32:33], s[0:1], 80
    v_lshrrev_b32 v2, 6, v0
    v_and_b32 v1, 63, v0
    s_nop 0
    v_readfirstlane_b32 s3, v2
    s_lshr_b32 s4, s2, 3
    s_and_b32 s5, s2, 7
    s_waitcnt lgkmcnt(0)""")
    srd(A, 36, 16, 17, 2048 * 512 * 2)
    srd(A, 44, 32, 33, WS_SIZE)
    stamp(A, 0, 0)
    A("""s_cmp_ge_u32 s2, 248
    s_cbranch_scc1 %s""" % ("K1_END" if "nogate" in FL else "K1_GATE"))
    srd(A, 48, 26, 27, 1376 * 2)
    A("""s_mov_b32 s42, %d
    s_mov_b32 s6, 2752
    s_cmp_lt_u32 s4, 16
    s_cselect_b32 s40, s18, s24
    s_cselect_b32 s41, s19, s25
    s_cselect_b32 s42, %d, s42
    s_mov_b32 s43, 0x20000
    s_cselect_b32 s6, 3072, s6
    s_cselect_b32 s8, 0, 16
    s_and_b32 s41, s41, 0xffff
    s_sub_u32 s8, s4, s8
    s_mul_i32 s7, s8, 96
    s_mul_i32 s9, s8, 3""" % (512 * 1376 * 2, 512 * 1536 * 2))
    A("""v_and_b32 v2, 31, v1
    v_lshrrev_b32 v3, 5, v1""")
    A("""v_lshrrev_b32 v4, 3, v1
    v_lshlrev_b32 v4, 10, v4
    v_and_b32 v5, 7, v1
    v_lshrrev_b32 v6, 4, v1
    v_xor_b32 v7, v5, v6
    v_lshl_add_u32 v10, v7, 4, v4
    v_add_u32 v6, 4, v6
    v_xor_b32 v7, v5, v6
    v_lshl_add_u32 v11, v7, 4, v4""")
    A("""s_add_u32 s10, s3, 8
    s_cmp_lt_u32 s3, 4
    s_cselect_b32 s10, s10, s3
    s_lshl_b32 s11, s7, 1
    s_mov_b32 s12, 0x15555556
    s_lshl_b32 s13, s3, 6
    s_lshl_b32 s14, s10, 6""")
    for qq in range(2):
        A(f"""v_add_u32 v4, s{13+qq}, v1
        v_mul_hi_u32 v5, v4, s12
        v_mul_u32_u24 v6, 12, v5
        v_sub_u32 v6, v4, v6
        v_mul_lo_u32 v5, v5, s6
        v_lshl_add_u32 v5, v6, 4, v5
        v_add_u32 v{12+qq}, s11, v5""")
    A("""s_lshl_b32 s58, s5, 18
    s_lshl_b32 s59, s3, 15
    s_add_u32 s58, s58, s59
    s_lshl_b32 s60, s3, 12
    s_lshl_b32 s61, s3, 10
    s_add_u32 s61, s61, 32768
    s_lshl_b32 s57, s10, 10
    s_add_u32 s57, s57, 32768
    s_lshl_b32 s62, s6, 6""")

    def dma(c, b):
        for q in range(4):
            A(f"""s_add_u32 m0, s60, {b*BUF + q*1024}
            s_add_u32 s63, s58, {q*8192 + c*128}
            buffer_load_dwordx4 v{10 + (q&1)}, s[36:39], s63 offen lds""")
        A(f"s_mul_i32 s63, s62, {c}")
        for qq in range(2):
            A(f"""s_add_u32 m0, s{61 if qq == 0 else 57}, {b*BUF}
            s_nop 0
            buffer_load_dwordx4 v{12+qq}, s[40:43], s63 offen lds""")

    dma(0, 0)
    A("""s_cmp_lt_u32 s4, 16
    s_cbranch_scc1 K1_NOB1
    v_lshlrev_b32 v4, 3, v3
    v_add_u32 v4, s11, v4""")
    for t in range(3):
        for q in range(4):
            A(f"buffer_load_dwordx2 v[{32+t*8+q*2}:{32+t*8+q*2+1}], v4, s[48:51], 0 offen offset:{t*64+q*16}")
    A("K1_NOB1:")
    dma(1, 1)
    A("""v_lshrrev_b32 v4, 1, v2
    v_and_b32 v4, 7, v4
    v_lshlrev_b32 v5, 7, v2
    v_add_u32 v5, s60, v5""")
    for u in range(4):
        A(f"""v_add_u32 v6, {2*u}, v3
        v_xor_b32 v6, v6, v4
        v_lshl_add_u32 v{16+u}, v6, 4, v5""")
    for b in (1, 2):
        for u in range(4):
            A(f"v_add_u32 v{16+4*b+u}, {b*BUF}, v{16+u}")
    A("""v_bfe_u32 v4, v1, 2, 2
    v_lshl_add_u32 v4, v3, 3, v4
    v_mul_u32_u24 v4, 192, v4
    v_bfe_u32 v5, v1, 4, 1
    v_lshl_add_u32 v4, v5, 5, v4
    v_and_b32 v5, 3, v1
    v_lshl_add_u32 v4, v5, 3, v4""")
    for b in range(3):
        A(f"v_add_u32 v{28+b}, {32768 + b*BUF}, v4")

    XF = 56
    WF = 64
    ACC = 88
    T = 136
    stamp(A, 0, 12)
    A("""s_cmp_ge_u32 s4, 16
    s_cbranch_scc1 K1_INITB""")
    for i in range(48):
        A(f"v_mov_b32 v{ACC+i}, 0")
    A("""s_branch K1_INITD
    K1_INITB:
    s_waitcnt vmcnt(6)""")
    for t in range(3):
        for i in range(8):
            bq = 32 + t * 8 + (i >> 1) * 2 + (i & 1)
            A(f"""v_lshlrev_b32 v{ACC+t*16+2*i}, 16, v{bq}
            v_and_b32 v{ACC+t*16+2*i+1}, 0xffff0000, v{bq}""")
    A("K1_INITD:")

    def reads(b, u, st):
        A(f"ds_read_b128 {vr(XF+st*4,4)}, v{16+4*b+u}")
        for t in range(3):
            for rd in range(2):
                A(f"ds_read_b64_tr_b16 {vr(WF+st*12+t*4+rd*2,2)}, v{28+b} offset:{(16*u+4*rd)*192+64*t}")

    def mainloop(variant):
        for c in range(8):
            b = c % 3
            if c < 7:
                A("s_waitcnt vmcnt(6)")
            else:
                A("s_waitcnt vmcnt(0)")
            A("s_barrier")
            stamp(A, 0, 1 + c)
            reads(b, 0, 0)
            if c + 2 < 8 and "k1nodma" not in FL:
                dma(c + 2, (c + 2) % 3)
            for u in range(4):
                st = u & 1
                if u < 3:
                    reads(b, u + 1, st ^ 1)
                    A("s_waitcnt lgkmcnt(7)")
                else:
                    A("s_waitcnt lgkmcnt(0)")
                for t in range(3):
                    acc = vr(ACC + t * 16, 16)
                    xf = vr(XF + st * 4, 4)
                    wf = vr(WF + st * 12 + t * 4, 4)
                    if "k1nomfma" in FL:
                        pass
                    elif variant[t] == "T":
                        A(f"v_mfma_f32_32x32x16_bf16 {acc}, {wf}, {xf}, {acc}")
                    else:
                        A(f"v_mfma_f32_32x32x16_bf16 {acc}, {xf}, {wf}, {acc}")
        A("s_nop 15")
        A("s_nop 3")

    stamp(A, 0, 13)
    A("""s_cmp_eq_u32 s4, 10
    s_cbranch_scc1 K1_TTN
    s_cmp_lt_u32 s4, 11
    s_cbranch_scc1 K1_TTT
    s_cmp_lt_u32 s4, 16
    s_cbranch_scc1 K1_NNN
    K1_TTT:""")
    mainloop("TTT")
    A("s_branch K1_EPI")
    A("K1_TTN:")
    mainloop("TTN")
    A("s_branch K1_EPI")
    A("K1_NNN:")
    mainloop("NNN")
    A("K1_EPI:")
    stamp(A, 0, 9)

    A(f"""v_lshlrev_b32 v4, 4, v1
    v_bfe_u32 v5, v1, 4, 1
    v_lshlrev_b32 v5, 16, v5
    v_lshl_add_u32 v5, v3, 8, v5
    v_and_b32 v6, 15, v1
    v_lshl_add_u32 v5, v6, 4, v5""")
    A("""s_lshl_b32 s64, s5, 3
    s_add_u32 s64, s64, s3
    s_lshl_b32 s65, s64, 10""")
    CQ = f2u(0.25 * LOG2E)
    for t in range(3):
        lq, lk, lv, lf, ln = (A.label("K1E") for _ in range(5))
        a = ACC + t * 16
        A(f"""s_add_u32 s66, s9, {t}
        s_cmp_ge_u32 s4, 16
        s_cbranch_scc1 {lf}
        s_and_b32 s67, s66, 15
        s_lshl_b32 s67, s67, 17
        s_add_u32 s68, s65, s67
        s_cmp_lt_u32 s66, 16
        s_cbranch_scc1 {lq}
        s_cmp_lt_u32 s66, 32
        s_cbranch_scc1 {lk}
        {lv}:""")
        for i in range(8):
            A(f"v_cvt_pk_bf16_f32 v{T+i}, v{a+2*i}, v{a+2*i+1}")
        A(f"""s_add_u32 s68, s68, {WS_VT}
        buffer_store_dwordx4 {vr(T,4)}, v5, s[44:47], s68 offen
        buffer_store_dwordx4 {vr(T+4,4)}, v5, s[44:47], s68 offen offset:512
        s_nop 1
        s_branch {ln}""")
        A(f"{lk}:")
        for i in range(8):
            A(f"v_cvt_pk_bf16_f32 v{T+i}, v{a+2*i}, v{a+2*i+1}")
        A(f"""s_lshl_b32 s71, s64, 2
        s_add_u32 s68, s68, {WS_KB}
        s_add_u32 s69, s68, 65536
        buffer_store_dwordx4 {vr(T,4)}, v4, s[44:47], s68 offen
        buffer_store_dwordx4 {vr(T+4,4)}, v4, s[44:47], s69 offen""")
        for hd in range(2):
            n = T + 8 + hd
            for i in range(4):
                A(f"""v_lshlrev_b32 v{T+12}, 16, v{T+hd*4+i}
                v_and_b32 v{T+13}, 0xffff0000, v{T+hd*4+i}""")
                if i == 0:
                    A(f"v_mul_f32 v{n}, v{T+12}, v{T+12}")
                else:
                    A(f"v_fmac_f32 v{n}, v{T+12}, v{T+12}")
                A(f"v_fmac_f32 v{n}, v{T+13}, v{T+13}")
        for hd in range(2):
            n = T + 8 + hd
            A(f"""v_mov_b32 v{T+12}, v{n}
            s_nop 1
            v_permlane32_swap_b32 v{n}, v{T+12}
            s_nop 1
            v_add_f32 v{n}, v{n}, v{T+12}
            s_nop 1
            v_max_f32_dpp v{n}, v{n}, v{n} quad_perm:[1,0,3,2] row_mask:0xf bank_mask:0xf
            s_nop 1
            v_max_f32_dpp v{n}, v{n}, v{n} quad_perm:[2,3,0,1] row_mask:0xf bank_mask:0xf
            s_nop 1
            v_max_f32_dpp v{n}, v{n}, v{n} row_half_mirror row_mask:0xf bank_mask:0xf
            s_nop 1
            v_max_f32_dpp v{n}, v{n}, v{n} row_mirror row_mask:0xf bank_mask:0xf
            s_nop 1
            v_mov_b32 v{T+12}, v{n}
            s_nop 1
            v_permlane16_swap_b32 v{n}, v{T+12}
            s_nop 1
            v_max_f32 v{n}, v{n}, v{T+12}""")
        A(f"""s_lshr_b32 s69, s67, 8
        s_add_u32 s71, s71, s69
        s_add_u32 s71, s71, {WS_KN}
        v_mov_b32 v{T+12}, 0
        buffer_store_dword v{T+8}, v{T+12}, s[44:47], s71 offen
        buffer_store_dword v{T+9}, v{T+12}, s[44:47], s71 offen offset:256
        s_nop 1
        s_branch {ln}""")
        A(f"{lq}:")
        A(f"s_mov_b32 s70, 0x{CQ:08x}")
        for i in range(8):
            x0, x1 = a + 2 * i, a + 2 * i + 1
            A(f"""v_cvt_pk_bf16_f32 v{T+i}, v{x0}, v{x1}
            v_lshlrev_b32 v{x0}, 16, v{T+i}
            v_and_b32 v{x1}, 0xffff0000, v{T+i}
            v_mul_f32 v{x0}, s70, v{x0}
            v_mul_f32 v{x1}, s70, v{x1}
            v_cvt_pk_bf16_f32 v{T+i}, v{x0}, v{x1}""")
        A(f"""s_add_u32 s69, s68, 65536
        buffer_store_dwordx4 {vr(T,4)}, v4, s[44:47], s68 offen
        buffer_store_dwordx4 {vr(T+4,4)}, v4, s[44:47], s69 offen
        s_nop 1
        s_branch {ln}""")
        A(f"""{lf}:
        s_cmp_ge_u32 s66, 43
        s_cbranch_scc1 {ln}
        s_mov_b32 s70, 0x{f2u(LOG2E):08x}
        s_mov_b32 s71, 0x41a00000""")
        for i in range(8):
            x0, x1 = a + 2 * i, a + 2 * i + 1
            p = T + 24
            bf16_round_pair(A, x0, x1, p)
            A(f"""v_min_f32 v{p+1}, s71, v{x0}
            v_min_f32 v{p+2}, s71, v{x1}
            v_mul_f32 v{p+1}, s70, v{p+1}
            v_mul_f32 v{p+2}, s70, v{p+2}
            v_exp_f32 v{p+1}, v{p+1}
            v_exp_f32 v{p+2}, v{p+2}
            s_nop 0
            v_add_f32 v{p+3}, 2.0, v{p+1}
            v_add_f32 v{p+4}, 2.0, v{p+2}
            v_mul_f32 v{p+1}, v{p+1}, v{p+3}
            v_mul_f32 v{p+2}, v{p+2}, v{p+4}
            v_add_f32 v{p+3}, 2.0, v{p+1}
            v_add_f32 v{p+4}, 2.0, v{p+2}
            v_rcp_f32 v{p+3}, v{p+3}
            v_rcp_f32 v{p+4}, v{p+4}
            v_mul_f32 v{x0}, v{x0}, v{p+1}
            v_mul_f32 v{x1}, v{x1}, v{p+2}
            v_mul_f32 v{x0}, v{x0}, v{p+3}
            v_mul_f32 v{x1}, v{x1}, v{p+4}
            v_cvt_pk_bf16_f32 v{T+i}, v{x0}, v{x1}""")
        A(f"""s_mul_i32 s68, s64, 43
        s_add_u32 s68, s68, s66
        s_lshl_b32 s68, s68, 11
        s_add_u32 s68, s68, {WS_ACT}
        buffer_store_dwordx4 {vr(T,4)}, v4, s[44:47], s68 offen
        buffer_store_dwordx4 {vr(T+4,4)}, v4, s[44:47], s68 offen offset:1024
        s_nop 1""")
        A(f"{ln}:")
    stamp(A, 0, 10)
    if "stamp" in FL:
        A("s_waitcnt vmcnt(0)")
    stamp(A, 0, 11)
    A("s_branch K1_END")

    A("K1_GATE:")
    srd(A, 48, 30, 31, 1024)
    A("""v_and_b32 v2, 7, v1
    v_lshrrev_b32 v3, 3, v1
    v_lshlrev_b32 v4, 7, v2""")
    for q in range(8):
        A(f"buffer_load_dwordx4 {vr(32+4*q,4)}, v4, s[48:51], 0 offen offset:{q*16}")
    A("""v_lshl_add_u32 v5, v3, 10, v4
    s_lshl_b32 s58, s5, 18
    s_lshl_b32 s59, s3, 15
    s_add_u32 s58, s58, s59""")
    for it in range(2):
        A(f"s_add_u32 s59, s58, {it*8192}")
        for q in range(8):
            A(f"buffer_load_dwordx4 {vr(128+it*32+4*q,4)}, v5, s[36:39], s59 offen offset:{q*16}")
    A("s_waitcnt vmcnt(16)")
    for d in range(32):
        A(f"""v_lshlrev_b32 v{64+2*d}, 16, v{32+d}
        v_and_b32 v{65+2*d}, 0xffff0000, v{32+d}""")
    A(f"""s_lshl_b32 s60, s5, 10
    s_lshl_b32 s61, s3, 7
    s_add_u32 s60, s60, s61
    s_add_u32 s60, s60, {WS_G}
    v_lshlrev_b32 v6, 2, v3
    s_mov_b32 s70, 0x{f2u(-LOG2E):08x}""")
    for it in range(4):
        xb = 128 + (it & 1) * 32
        A("""v_mov_b32 v8, 0
        v_mov_b32 v9, 0""")
        A("s_waitcnt vmcnt(8)" if it < 3 else "s_waitcnt vmcnt(0)")
        if it >= 1:
            pass
        for d in range(32):
            A(f"""v_lshlrev_b32 v10, 16, v{xb+d}
            v_and_b32 v11, 0xffff0000, v{xb+d}
            v_mul_f32 v10, v10, v{64+2*d}
            v_mul_f32 v11, v11, v{65+2*d}
            v_cvt_pk_bf16_f32 v12, v10, v11
            v_lshlrev_b32 v10, 16, v12
            v_and_b32 v11, 0xffff0000, v12
            v_add_f32 v8, v8, v10
            v_add_f32 v9, v9, v11""")
        if it + 2 < 4:
            A(f"s_add_u32 s59, s58, {(it+2)*8192}")
            for q in range(8):
                A(f"buffer_load_dwordx4 {vr(xb+4*q,4)}, v5, s[36:39], s59 offen offset:{q*16}")
        A(f"""v_add_f32 v8, v8, v9
        s_nop 1
        v_add_f32_dpp v8, v8, v8 quad_perm:[1,0,3,2] row_mask:0xf bank_mask:0xf
        s_nop 1
        v_add_f32_dpp v8, v8, v8 quad_perm:[2,3,0,1] row_mask:0xf bank_mask:0xf
        s_nop 1
        v_add_f32_dpp v8, v8, v8 row_half_mirror row_mask:0xf bank_mask:0xf
        s_nop 1
        v_cvt_pk_bf16_f32 v9, v8, v8
        v_lshlrev_b32 v8, 16, v9
        v_mul_f32 v8, s70, v8
        v_exp_f32 v8, v8
        s_nop 0
        v_add_f32 v8, 1.0, v8
        v_rcp_f32 v8, v8
        s_nop 0
        v_cvt_pk_bf16_f32 v9, v8, v8
        v_lshlrev_b32 v13, 16, v9
        buffer_store_dword v13, v6, s[44:47], s60 offen offset:{it*32}""")
    A("""K1_END:
    s_endpgm""")


def gen_k2(A):
    QB = 8
    KF = 20
    VF = 36
    P = 52
    NEGM = 68
    SA, SB = 84, 100
    O = 116
    M0, M1 = 132, 133
    A("k2_kernel:")
    A("""s_cmp_ge_u32 s2, 256
    s_cbranch_scc1 K2_END
    s_load_dwordx2 s[32:33], s[0:1], 80
    s_load_dwordx2 s[28:29], s[0:1], 48
    s_load_dwordx2 s[34:35], s[0:1], 16
    s_load_dwordx4 s[36:39], s[0:1], 64
    v_lshrrev_b32 v2, 6, v0
    v_and_b32 v1, 63, v0
    s_nop 0
    v_readfirstlane_b32 s3, v2
    s_and_b32 s4, s2, 7
    s_lshl_b32 s4, s4, 2
    s_bfe_u32 s5, s2, 0x20003
    s_add_u32 s4, s4, s5
    s_lshr_b32 s5, s2, 5
    s_waitcnt lgkmcnt(0)""")
    srd(A, 44, 32, 33, WS_SIZE)
    stamp(A, 1, 0)
    A("""v_lshlrev_b32 v2, 4, v1
    v_mov_b32 v3, 0x23000
    v_mov_b32 v4, 0
    v_mov_b32 v5, 0
    ds_write_b64 v3, v[4:5]
    ds_write_b64 v3, v[4:5] offset:8
    ds_write_b64 v3, v[4:5] offset:16
    s_lshl_b32 s26, s5, 2
    s_lshr_b32 s27, s4, 3
    s_add_u32 s26, s26, s27
    s_and_b32 s27, s4, 7
    s_waitcnt lgkmcnt(0)
    s_barrier
    s_cmp_ge_u32 s3, 8
    s_cbranch_scc1 K2_FFN""")
    A(f"""s_lshl_b32 s6, s4, 16
    s_lshl_b32 s7, s3, 13
    s_add_u32 s8, s6, s7
    s_add_u32 s9, s8, {WS_KB}
    s_add_u32 s10, s8, {WS_VT}""")
    A(f"""s_lshl_b32 s12, s5, 3
    s_add_u32 s12, s12, s3
    s_lshl_b32 s13, s12, 10
    s_add_u32 s13, s13, s6
    buffer_load_dwordx4 {vr(QB,4)}, v2, s[44:47], s13 offen
    s_lshl_b32 s14, s4, 8
    s_add_u32 s14, s14, {WS_KN}
    v_lshlrev_b32 v3, 2, v1
    buffer_load_dword v12, v3, s[44:47], s14 offen""")
    A(f"""s_lshl_b32 s7, s3, 11
    s_add_u32 s9, s6, s7
    s_add_u32 s10, s9, {WS_VT}
    s_add_u32 s9, s9, {WS_KB}""")
    for q in range(2):
        A(f"""s_add_u32 m0, s7, {q*1024}
        s_add_u32 s11, s9, {q*1024}
        buffer_load_dwordx4 v2, s[44:47], s11 offen lds
        s_add_u32 m0, s7, {65536+q*1024}
        s_add_u32 s11, s10, {q*1024}
        buffer_load_dwordx4 v2, s[44:47], s11 offen lds""")
    A(f"""s_mul_i32 s7, s3, 6144
    s_add_u32 s7, s7, 16384
    s_add_u32 s9, s6, s7
    s_add_u32 s10, s9, {WS_VT}
    s_add_u32 s9, s9, {WS_KB}""")
    for q in range(6):
        A(f"""s_add_u32 m0, s7, {q*1024}
        s_add_u32 s11, s9, {q*1024}
        buffer_load_dwordx4 v2, s[44:47], s11 offen lds
        s_add_u32 m0, s7, {65536+q*1024}
        s_add_u32 s11, s10, {q*1024}
        buffer_load_dwordx4 v2, s[44:47], s11 offen lds""")

    def sync8(idx, vm):
        l = A.label("SY")
        A(f"""s_waitcnt vmcnt({vm})
        v_mov_b32 v134, 0x23000
        v_mov_b32 v135, 1
        s_mov_b64 exec, 1
        ds_add_u32 v134, v135 offset:{idx*4}
        s_mov_b64 exec, -1
        {l}:
        ds_read_b32 v135, v134 offset:{idx*4}
        s_waitcnt lgkmcnt(0)
        v_readfirstlane_b32 s21, v135
        s_cmp_lt_u32 s21, 8
        s_cbranch_scc1 {l}""")
    A("""v_and_b32 v3, 31, v1
    v_lshrrev_b32 v4, 5, v1
    v_and_b32 v5, 15, v1
    v_lshlrev_b32 v5, 4, v5
    v_lshl_add_u32 v5, v4, 8, v5
    v_add_u32 v13, 0x10000, v5
    v_and_b32 v4, 0x1b, v3
    v_mov_b32 v5, 0x3f803f80
    v_cmp_eq_u32 vcc, 16, v4
    s_nop 1
    v_cndmask_b32 v5, 0, v5, vcc
    s_mov_b32 s30, 0x0000ffff
    s_mov_b32 s31, 0x0000ffff
    s_mov_b32 s23, 0
    s_mov_b32 s25, 0x07060302""")
    for r in range(16):
        A(f"v_mov_b32 v{VF+r}, v5")
    A("s_waitcnt vmcnt(16)")
    for i in range(4):
        A(f"""v_lshlrev_b32 v14, 16, v{QB+i}
        v_and_b32 v15, 0xffff0000, v{QB+i}""")
        A("v_mul_f32 v16, v14, v14" if i == 0 else "v_fmac_f32 v16, v14, v14")
        A("v_fmac_f32 v16, v15, v15")
    A("""v_mov_b32 v14, v16
    s_nop 1
    v_permlane32_swap_b32 v16, v14
    s_nop 1
    v_add_f32 v16, v16, v14
    v_max_f32_dpp v12, v12, v12 quad_perm:[1,0,3,2] row_mask:0xf bank_mask:0xf
    s_nop 1
    v_max_f32_dpp v12, v12, v12 quad_perm:[2,3,0,1] row_mask:0xf bank_mask:0xf
    s_nop 1
    v_max_f32_dpp v12, v12, v12 row_half_mirror row_mask:0xf bank_mask:0xf
    s_nop 1
    v_max_f32_dpp v12, v12, v12 row_mirror row_mask:0xf bank_mask:0xf
    s_nop 1
    v_mov_b32 v14, v12
    s_nop 1
    v_permlane16_swap_b32 v12, v14
    s_nop 1
    v_max_f32 v12, v12, v14
    s_nop 1
    v_mov_b32 v14, v12
    s_nop 1
    v_permlane32_swap_b32 v12, v14
    s_nop 1
    v_max_f32 v12, v12, v14
    v_mul_f32 v16, v16, v12
    v_sqrt_f32 v16, v16
    s_nop 0""")
    A(f"v_mul_f32 v{M0}, 0x{f2u(-(1.0+2.0**-7)):08x}, v16")
    sync8(0, 12)
    stamp(A, 1, 1)
    S = [SA, SB]
    A("K2_P2START:")
    for r in range(16):
        A(f"v_mov_b32 v{NEGM+r}, v{M0}")
        A(f"v_mov_b32 v{P+r}, 0")
        A(f"v_mov_b32 v{O+r}, 0")
    A(f"""v_mov_b32 v6, v2
    v_mov_b32 v7, v13
    ds_read_b128 {vr(KF,4)}, v6
    ds_read_b128 {vr(KF+4,4)}, v6 offset:1024
    s_waitcnt lgkmcnt(1)
    v_mfma_f32_32x32x16_bf16 {vr(SA,16)}, {vr(KF,4)}, {vr(QB,4)}, {vr(NEGM,16)}
    s_nop 7
    s_nop 3
    s_mov_b32 s20, 0
    K2_P2:
    s_cmp_eq_u32 s20, 3
    s_cbranch_scc0 K2_NOSYNC
    s_cmp_eq_u32 s23, 0
    s_cbranch_scc0 K2_NOSYNC""")
    sync8(1, 0)
    A("K2_NOSYNC:")
    for t in range(4):
        X, Y = S[t & 1], S[(t + 1) & 1]
        vcur, vprv = VF + (t & 1) * 8, VF + ((t + 1) & 1) * 8
        pcur, pprv = P + (t & 1) * 8, P + ((t + 1) & 1) * 8
        kn = KF + ((t + 1) % 4) * 4
        A(f"""ds_read_b128 {vr(KF+((t+2)%4)*4,4)}, v6 offset:{(t+2)*1024}
        s_mov_b64 exec, s[30:31]
        ds_read_b128 {vr(vcur,4)}, v7 offset:{t*1024}
        ds_read_b128 {vr(vcur+4,4)}, v7 offset:{t*1024+512}
        s_mov_b64 exec, -1
        s_waitcnt lgkmcnt(3)""")
        def mf(x):
            if "nomfma" not in FL:
                A(x)
        def ex(r):
            if "noexp" in FL:
                A(f"v_mov_b32 v{X+r}, v{X+r}")
            elif "noexp2" not in FL:
                A(f"v_exp_f32 v{X+r}, v{X+r}")
        mf(f"v_mfma_f32_32x32x16_bf16 {vr(Y,16)}, {vr(kn,4)}, {vr(QB,4)}, {vr(NEGM,16)}")
        for r in range(0, 5):
            ex(r)
        mf(f"v_mfma_f32_32x32x16_bf16 {vr(O,16)}, {vr(vprv,4)}, {vr(pprv,4)}, {vr(O,16)}")
        for r in range(5, 10):
            ex(r)
        mf(f"v_mfma_f32_32x32x16_bf16 {vr(O,16)}, {vr(vprv+4,4)}, {vr(pprv+4,4)}, {vr(O,16)}")
        for r in range(10, 16):
            ex(r)
        if "nocvt" not in FL:
            for i in range(8):
                if "perm" in FL:
                    A(f"v_perm_b32 v{pcur+i}, v{X+2*i+1}, v{X+2*i}, s25")
                else:
                    A(f"v_cvt_pk_bf16_f32 v{pcur+i}, v{X+2*i}, v{X+2*i+1}")
    A("""v_add_u32 v6, 0x1000, v6
    v_add_u32 v7, 0x1000, v7
    s_add_u32 s20, s20, 1
    s_cmp_lt_u32 s20, 16
    s_cbranch_scc1 K2_P2""")
    A(f"""s_waitcnt lgkmcnt(0)
    s_nop 1
    v_mfma_f32_32x32x16_bf16 {vr(O,16)}, {vr(VF+8,4)}, {vr(P+8,4)}, {vr(O,16)}
    v_mfma_f32_32x32x16_bf16 {vr(O,16)}, {vr(VF+12,4)}, {vr(P+12,4)}, {vr(O,16)}
    s_nop 15
    s_nop 3""")
    A(f"""s_mov_b32 s24, 0x27000000
    v_cmp_nle_f32 vcc, s24, v{O+8}
    s_cmp_eq_u32 s23, 0
    s_cbranch_scc0 K2_FIN
    s_cbranch_vccz K2_FIN
    s_mov_b32 s23, 1""" if "forcefb" not in FL and "nofb" not in FL else "s_branch K2_FIN" if "nofb" in FL else f"""s_cmp_eq_u32 s23, 0
    s_cbranch_scc0 K2_FIN
    s_mov_b32 s23, 1""")
    A(f"""v_mov_b32 v{M0}, 0xff800000
    v_mov_b32 v{M1}, 0xff800000
    v_mov_b32 v6, v2
    ds_read_b128 {vr(KF,4)}, v6
    ds_read_b128 {vr(KF+4,4)}, v6 offset:1024
    s_waitcnt lgkmcnt(1)
    v_mfma_f32_32x32x16_bf16 {vr(SA,16)}, {vr(KF,4)}, {vr(QB,4)}, 0
    s_nop 7
    s_mov_b32 s20, 0
    K2_P1:""")
    for t in range(4):
        X, Y = S[t & 1], S[(t + 1) & 1]
        A(f"""ds_read_b128 {vr(KF+((t+2)%4)*4,4)}, v6 offset:{(t+2)*1024}
        s_waitcnt lgkmcnt(1)
        v_mfma_f32_32x32x16_bf16 {vr(Y,16)}, {vr(KF+((t+1)%4)*4,4)}, {vr(QB,4)}, 0
        s_nop 1""")
        for i in range(4):
            A(f"""v_max3_f32 v{M0}, v{M0}, v{X+4*i}, v{X+4*i+1}
            v_max3_f32 v{M1}, v{M1}, v{X+4*i+2}, v{X+4*i+3}""")
    A(f"""v_add_u32 v6, 0x1000, v6
    s_add_u32 s20, s20, 1
    s_cmp_lt_u32 s20, 16
    s_cbranch_scc1 K2_P1
    v_max_f32 v{M0}, v{M0}, v{M1}
    s_nop 1
    v_mov_b32 v{M1}, v{M0}
    s_nop 1
    v_permlane32_swap_b32 v{M0}, v{M1}
    s_nop 1
    v_max_f32 v{M0}, v{M0}, v{M1}
    v_sub_f32 v{M0}, 0, v{M0}
    s_waitcnt lgkmcnt(0)
    s_nop 7
    s_nop 7
    s_branch K2_P2START
    K2_FIN:""")
    stamp(A, 1, 3)
    A(f"""v_rcp_f32 v{M0}, v{O+8}
    s_nop 0""")
    for r in range(8):
        A(f"v_mul_f32 v{O+r}, v{O+r}, v{M0}")
    for i in range(4):
        A(f"v_cvt_pk_bf16_f32 v{P+i}, v{O+2*i}, v{O+2*i+1}")
    A(f"""s_lshl_b32 s13, s12, 5
    s_add_u32 s13, s13, s4
    s_lshl_b32 s13, s13, 10
    s_add_u32 s13, s13, {WS_OB}
    buffer_store_dwordx4 {vr(P,4)}, v2, s[44:47], s13 offen""")
    BFT, AFT, ACT_, TT = 20, 84, 100, 120
    srd(A, 48, 34, 35, 512 * 512 * 2)
    srd(A, 52, 38, 39, 256)
    srd(A, 56, 36, 37, 2048 * 512 * 2)
    sync8(2, 0)
    stamp(A, 1, 4)
    A("""s_lshl_b32 s60, s5, 5
    v_mov_b32 v10, s60
    v_mov_b32 v11, 1
    s_cmp_eq_u32 s3, 0
    s_cbranch_scc0 K2T_NOARR
    s_mov_b64 exec, 1
    buffer_atomic_add v11, v10, s[52:55], 0 offen sc1
    s_mov_b64 exec, -1
    K2T_NOARR:""")
    A("""v_lshrrev_b32 v4, 3, v1
    v_lshlrev_b32 v4, 10, v4
    v_bfe_u32 v5, v1, 4, 1
    v_lshlrev_b32 v5, 2, v5
    v_and_b32 v6, 7, v1
    v_xor_b32 v5, v5, v6
    v_lshl_add_u32 v4, v5, 4, v4
    s_lshl_b32 s9, s27, 7
    v_add_u32 v8, s9, v4
    s_lshl_b32 s14, s3, 16
    s_lshl_b32 s15, s3, 13""")
    for q in range(8):
        A(f"""s_add_u32 m0, s15, {q*1024}
        s_add_u32 s16, s14, {q*8192}
        buffer_load_dwordx4 v8, s[48:51], s16 offen lds""")
    A("""s_and_b32 s61, s3, 1
    s_bfe_u32 s62, s3, 0x10001
    v_mov_b32 v134, 0x23000
    v_mov_b32 v135, 1
    s_waitcnt vmcnt(0)
    s_mov_b64 exec, 1
    ds_add_u32 v134, v135 offset:12
    s_mov_b64 exec, -1
    s_cmp_ge_u32 s3, 4
    s_cbranch_scc1 K2_END""")
    A("""v_bfe_u32 v5, v1, 2, 2
    v_lshrrev_b32 v6, 5, v1
    v_lshl_add_u32 v6, v6, 2, v5
    v_lshlrev_b32 v6, 7, v6
    v_bfe_u32 v7, v1, 0, 1
    v_lshl_add_u32 v6, v7, 5, v6
    v_bfe_u32 v7, v1, 4, 1
    v_lshl_add_u32 v6, v7, 4, v6
    v_bfe_u32 v7, v1, 1, 1
    v_lshl_add_u32 v6, v7, 3, v6
    v_bfe_u32 v7, v1, 3, 1
    v_xor_b32 v7, s62, v7
    v_lshl_add_u32 v3, v7, 6, v6""")
    A(f"""s_lshl_b32 s63, s26, 6
    s_lshl_b32 s64, s61, 5
    s_add_u32 s63, s63, s64
    v_and_b32 v7, 31, v1
    v_add_u32 v7, s63, v7
    v_lshlrev_b32 v9, 2, v7
    s_mov_b32 s64, {WS_G}
    buffer_load_dword v12, v9, s[44:47], s64 offen""")
    for i in range(16):
        A(f"v_mov_b32 v{ACT_+i}, 0")
    A(f"""s_lshl_b32 s16, s26, 1
    s_add_u32 s16, s16, s61
    s_lshl_b32 s16, s16, 15
    s_add_u32 s16, s16, {WS_OB}""")
    A("""s_cmp_eq_u32 s3, 0
    s_cbranch_scc0 K2T_WAITL
    K2T_POLL:
    buffer_load_dword v11, v10, s[52:55], 0 offen sc1
    s_waitcnt vmcnt(0)
    v_readfirstlane_b32 s21, v11
    s_cmp_ge_u32 s21, 32
    s_cbranch_scc1 K2T_GO
    s_sleep 1
    s_branch K2T_POLL
    K2T_GO:
    v_mov_b32 v135, 1
    ds_write_b32 v134, v135 offset:16
    s_branch K2T_RDY
    K2T_WAITL:
    ds_read_b32 v135, v134 offset:16
    s_waitcnt lgkmcnt(0)
    v_readfirstlane_b32 s21, v135
    s_cmp_eq_u32 s21, 0
    s_cbranch_scc0 K2T_RDY
    s_sleep 1
    s_branch K2T_WAITL
    K2T_RDY:""")
    stamp(A, 1, 5)
    for bt in range(2):
        for hd in range(16):
            if hd % 4 == 0:
                A(f"s_add_u32 s17, s16, {(bt*16+hd)*1024}")
            A(f"buffer_load_dwordx4 {vr(BFT+hd*4,4)}, v2, s[44:47], s17 offen offset:{(hd%4)*1024} sc1")
        if bt == 0:
            A("""K2T_WAIT3:
            ds_read_b64 v[136:137], v134 offset:12
            ds_read_b32 v135, v134 offset:20
            s_waitcnt lgkmcnt(0)
            v_readfirstlane_b32 s21, v136
            v_readfirstlane_b32 s22, v135
            s_cmp_ge_u32 s21, 8
            s_cbranch_scc0 K2T_WAIT3
            s_cmp_ge_u32 s22, 2
            s_cbranch_scc0 K2T_WAIT3""")
        for g4 in range(4):
            for kk in range(4):
                ks = bt * 16 + g4 * 4 + kk
                c, u = ks >> 1, ks & 1
                for rd in range(2):
                    A(f"ds_read_b64_tr_b16 {vr(AFT+kk*4+rd*2,2)}, v3 offset:{c*4096+(16*u+8*rd)*128}")
            A(f"s_waitcnt vmcnt({12-4*g4})")
            for kk in range(4):
                A(f"s_waitcnt lgkmcnt({6-2*kk})")
                acc = vr(ACT_, 16)
                A(f"v_mfma_f32_32x32x16_bf16 {acc}, {vr(AFT+kk*4,4)}, {vr(BFT+(g4*4+kk)*4,4)}, {acc}")
        if bt == 0:
            A("s_nop 7")
    stamp(A, 1, 6)
    A(f"""s_lshl_b32 s14, s62, 14
    s_lshl_b32 s15, s61, 11
    s_add_u32 s14, s14, s15
    s_add_u32 s14, s14, 0x20000
    v_lshlrev_b32 v5, 5, v1
    v_add_u32 v5, s14, v5
    ds_read_b128 {vr(TT+16,4)}, v5
    ds_read_b128 {vr(TT+20,4)}, v5 offset:16""")
    A("""v_lshlrev_b32 v8, 10, v7
    v_lshrrev_b32 v10, 5, v1
    v_lshl_add_u32 v8, v10, 5, v8
    s_lshl_b32 s14, s27, 7
    s_lshl_b32 s15, s62, 6
    s_add_u32 s14, s14, s15
    v_sub_f32 v10, 1.0, v12
    v_cvt_pk_bf16_f32 v11, v10, v10
    v_lshlrev_b32 v10, 16, v11
    s_waitcnt lgkmcnt(0)
    s_nop 7""")
    for i in range(8):
        a0, a1 = ACT_ + 2 * i, ACT_ + 2 * i + 1
        b0, b1 = 36 + 2 * i, 36 + 2 * i + 1
        A(f"""v_lshlrev_b32 v{b0}, 16, v{TT+16+i}
        v_and_b32 v{b1}, 0xffff0000, v{TT+16+i}""")
        bf16_round_pair(A, a0, a1, TT + 8)
        A(f"""v_mul_f32 v{a0}, v{a0}, v12
        v_mul_f32 v{a1}, v{a1}, v12
        v_mul_f32 v{b0}, v{b0}, v10
        v_mul_f32 v{b1}, v{b1}, v10""")
        bf16_round_pair(A, a0, a1, TT + 8)
        bf16_round_pair(A, b0, b1, TT + 9)
        A(f"""v_add_f32 v{a0}, v{a0}, v{b0}
        v_add_f32 v{a1}, v{a1}, v{b1}
        v_cvt_pk_bf16_f32 v{TT+i}, v{a0}, v{a1}""")
    stamp(A, 1, 7)
    A(f"""buffer_store_dwordx4 {vr(TT,4)}, v8, s[56:59], s14 offen
    buffer_store_dwordx4 {vr(TT+4,4)}, v8, s[56:59], s14 offen offset:16
    s_branch K2_END""")

    NS = 6
    BF = 16
    AF = 112
    ACC = 120
    A("K2_FFN:")
    srd(A, 40, 28, 29, 1376 * 512 * 2)
    A(f"""s_sub_u32 s3, s3, 8
    s_mov_b32 s4, s26
    s_mov_b32 s5, s27
    s_lshl_b32 s8, s4, 1
    s_mul_i32 s10, s8, 86
    s_lshl_b32 s10, s10, 10
    s_add_u32 s10, s10, {WS_ACT}
    s_add_u32 s11, s10, {86*1024}
    s_mov_b32 s14, 0
    s_lshl_b32 s15, s3, 14
    s_add_u32 s15, s15, 0x20000""")
    A("""v_lshrrev_b32 v4, 2, v1
    v_lshlrev_b32 v4, 10, v4
    v_and_b32 v6, 3, v1
    v_lshl_add_u32 v4, v6, 4, v4
    s_lshl_b32 s9, s5, 7
    s_lshl_b32 s12, s3, 6
    s_add_u32 s9, s9, s12
    v_add_u32 v8, s9, v4""")
    A("""v_bfe_u32 v5, v1, 2, 2
    v_lshrrev_b32 v6, 5, v1
    v_lshl_add_u32 v6, v6, 2, v5
    v_lshlrev_b32 v6, 6, v6
    v_add_u32 v6, s15, v6
    v_bfe_u32 v7, v1, 0, 1
    v_lshl_add_u32 v6, v7, 5, v6
    v_bfe_u32 v7, v1, 4, 1
    v_lshl_add_u32 v6, v7, 4, v6
    v_bfe_u32 v7, v1, 1, 1
    v_lshl_add_u32 v3, v7, 3, v6""")
    for i in range(32):
        A(f"v_mov_b32 v{ACC+i}, 0")

    def issue(stg):
        for q in range(2):
            A(f"""s_add_u32 m0, s15, {stg*2048 + q*1024}
            s_add_u32 s52, s14, {q*16384}
            buffer_load_dwordx4 v8, s[40:43], s52 offen lds""")
        for st in range(2):
            for u in range(2):
                A(f"buffer_load_dwordx4 {vr(BF+stg*16+(u*2+st)*4,4)}, v2, s[44:47], s{10+st} offen offset:{u*1024}")
        A("""s_add_u32 s14, s14, 32768
        s_add_u32 s10, s10, 2048
        s_add_u32 s11, s11, 2048""")

    for stg in range(NS - 1):
        issue(stg)
    A("""s_mov_b32 s53, 0
    K2F_LOOP:""")
    for stg in range(NS):
        issue((stg + NS - 1) % NS)
        A(f"s_waitcnt vmcnt({6*(NS-1)})")
        for u in range(2):
            for rd in range(2):
                A(f"ds_read_b64_tr_b16 {vr(AF+u*4+rd*2,2)}, v3 offset:{stg*2048+(16*u+8*rd)*64}")
        for u in range(2):
            A(f"s_waitcnt lgkmcnt({2 if u == 0 else 0})")
            for st in range(2):
                acc = vr(ACC + st * 16, 16)
                A(f"v_mfma_f32_32x32x16_bf16 {acc}, {vr(AF+u*4,4)}, {vr(BF+stg*16+(u*2+st)*4,4)}, {acc}")
        A("""s_add_u32 s53, s53, 1
        s_cmp_ge_u32 s53, 43
        s_cbranch_scc1 K2F_DONE""")
    A("s_branch K2F_LOOP")
    A(f"""K2F_DONE:
    s_waitcnt vmcnt(0)
    v_lshlrev_b32 v4, 5, v1
    v_add_u32 v4, s15, v4
    s_nop 15
    s_nop 3""")
    for st in range(2):
        for i in range(8):
            A(f"v_cvt_pk_bf16_f32 v{BF+st*8+i}, v{ACC+st*16+2*i}, v{ACC+st*16+2*i+1}")
        A(f"""ds_write_b128 v4, {vr(BF+st*8,4)} offset:{st*2048}
        ds_write_b128 v4, {vr(BF+st*8+4,4)} offset:{st*2048+16}""")
    A("""s_waitcnt lgkmcnt(0)
    v_mov_b32 v5, 0x23000
    v_mov_b32 v6, 1
    s_mov_b64 exec, 1
    ds_add_u32 v5, v6 offset:20
    s_mov_b64 exec, -1
    s_waitcnt lgkmcnt(0)
    K2_END:
    s_endpgm""")


def gen_k3(A):
    BF = 16
    AF = 80
    ACC = 96
    PB = 160
    T = 224
    A("k3_kernel:")
    A("""s_cmp_ge_u32 s2, 256
    s_cbranch_scc1 K3_END
    s_load_dwordx2 s[20:21], s[0:1], 16
    s_load_dwordx2 s[32:33], s[0:1], 80
    s_load_dwordx2 s[34:35], s[0:1], 64
    v_lshrrev_b32 v2, 6, v0
    v_and_b32 v1, 63, v0
    s_nop 0
    v_readfirstlane_b32 s3, v2
    s_lshr_b32 s4, s2, 3
    s_and_b32 s5, s2, 7
    s_waitcnt lgkmcnt(0)""")
    srd(A, 44, 32, 33, WS_SIZE)
    srd(A, 48, 34, 35, 2048 * 512 * 2)
    srd(A, 40, 20, 21, 512 * 512 * 2)
    stamp(A, 2, 0)
    A(f"""s_lshl_b32 s8, s4, 6
    s_lshl_b32 s13, s3, 3
    s_add_u32 s10, s8, s13
    s_lshl_b32 s10, s10, 10
    s_add_u32 s10, s10, {WS_OB}
    s_add_u32 s11, s10, 32768
    s_lshl_b32 s14, s3, 17
    s_lshl_b32 s15, s3, 14""")
    A("""v_lshrrev_b32 v4, 3, v1
    v_lshlrev_b32 v4, 10, v4
    v_bfe_u32 v5, v1, 4, 1
    v_lshlrev_b32 v5, 2, v5
    v_and_b32 v6, 7, v1
    v_xor_b32 v5, v5, v6
    v_lshl_add_u32 v4, v5, 4, v4
    s_lshl_b32 s9, s5, 7
    v_add_u32 v2, s9, v4""")
    A("""v_bfe_u32 v5, v1, 2, 2
    v_lshrrev_b32 v6, 5, v1
    v_lshl_add_u32 v6, v6, 2, v5
    v_lshlrev_b32 v6, 7, v6
    v_add_u32 v6, s15, v6
    v_bfe_u32 v7, v1, 0, 1
    v_lshl_add_u32 v6, v7, 5, v6
    v_bfe_u32 v7, v1, 4, 1
    v_lshl_add_u32 v6, v7, 4, v6
    v_bfe_u32 v7, v1, 1, 1
    v_lshl_add_u32 v6, v7, 3, v6
    v_bfe_u32 v7, v1, 3, 1
    v_lshl_add_u32 v3, v7, 6, v6
    v_xor_b32 v7, 1, v7
    v_lshl_add_u32 v4, v7, 6, v6
    v_lshlrev_b32 v5, 4, v1""")

    for stg in range(4):
        for q in range(4):
            A(f"""s_add_u32 m0, s15, {stg*4096 + q*1024}
            s_add_u32 s52, s14, {stg*32768 + q*8192}
            buffer_load_dwordx4 v2, s[40:43], s52 offen lds""")
        for st in range(2):
            for u in range(2):
                A(f"buffer_load_dwordx4 {vr(BF+stg*16+(u*2+st)*4,4)}, v5, s[44:47], s{10+st} offen offset:{u*1024}")
        A("""s_add_u32 s10, s10, 2048
        s_add_u32 s11, s11, 2048""")
    A(f"""s_lshl_b32 s16, s2, 2
    s_add_u32 s16, s16, s3
    s_lshl_b32 s16, s16, 11
    s_add_u32 s16, s16, {WS_PART}
    v_lshlrev_b32 v6, 5, v1
    buffer_load_dwordx4 {vr(PB,4)}, v6, s[44:47], s16 offen
    buffer_load_dwordx4 {vr(PB+4,4)}, v6, s[44:47], s16 offen offset:16""")
    A(f"""s_and_b32 s8, s3, 1
    s_lshr_b32 s9, s3, 1
    s_lshl_b32 s10, s4, 6
    s_lshl_b32 s11, s8, 5
    s_add_u32 s10, s10, s11
    v_and_b32 v7, 31, v1
    v_add_u32 v7, s10, v7
    v_lshlrev_b32 v8, 2, v7
    s_mov_b32 s12, {WS_G}
    buffer_load_dword v9, v8, s[44:47], s12 offen""")
    for i in range(64):
        A(f"v_mov_b32 v{ACC+i}, 0")
    stamp(A, 2, 1)
    for stg in range(4):
        A(f"s_waitcnt vmcnt({3 + 8*(3-stg)})")
        for u in range(2):
            for nt in range(2):
                for rd in range(2):
                    A(f"ds_read_b64_tr_b16 {vr(AF+(u*2+nt)*4+rd*2,2)}, v{3+nt} offset:{stg*4096+(16*u+8*rd)*128}")
        for u in range(2):
            A(f"s_waitcnt lgkmcnt({4 if u == 0 else 0})")
            for nt in range(2):
                for st in range(2):
                    acc = vr(ACC + (nt * 2 + st) * 16, 16)
                    A(f"v_mfma_f32_32x32x16_bf16 {acc}, {vr(AF+(u*2+nt)*4,4)}, {vr(BF+stg*16+(u*2+st)*4,4)}, {acc}")
    A("""s_nop 15
    s_nop 3""")
    stamp(A, 2, 2)
    A("""v_lshlrev_b32 v6, 4, v1
    v_add_u32 v6, s15, v6""")
    for tl in range(4):
        for q in range(4):
            A(f"ds_write_b128 v6, {vr(ACC+tl*16+q*4,4)} offset:{tl*4096+q*1024}")
    A("""s_waitcnt lgkmcnt(0)
    s_barrier
    s_lshl_b32 s13, s3, 12
    v_lshlrev_b32 v6, 4, v1
    v_add_u32 v6, s13, v6""")
    for w in range(4):
        for q in range(4):
            A(f"ds_read_b128 {vr(ACC+w*16+q*4,4)}, v6 offset:{w*16384+q*1024}")
    A("""v_lshlrev_b32 v8, 10, v7
    v_lshrrev_b32 v10, 5, v1
    v_lshl_add_u32 v8, v10, 5, v8
    s_lshl_b32 s14, s5, 7
    s_lshl_b32 s15, s9, 6
    s_add_u32 s14, s14, s15
    s_waitcnt vmcnt(0) lgkmcnt(0)
    v_sub_f32 v10, 1.0, v9
    v_cvt_pk_bf16_f32 v11, v10, v10
    v_lshlrev_b32 v10, 16, v11""")
    for i in range(8):
        a0, a1 = ACC + 2 * i, ACC + 2 * i + 1
        b0, b1 = PB + 16 + 2 * i, PB + 16 + 2 * i + 1
        A(f"""v_add_f32 v{a0}, v{a0}, v{a0+16}
        v_add_f32 v{a1}, v{a1}, v{a1+16}
        v_add_f32 v{a0+32}, v{a0+32}, v{a0+48}
        v_add_f32 v{a1+32}, v{a1+32}, v{a1+48}
        v_add_f32 v{a0}, v{a0}, v{a0+32}
        v_add_f32 v{a1}, v{a1}, v{a1+32}
        v_lshlrev_b32 v{b0}, 16, v{PB+i}
        v_and_b32 v{b1}, 0xffff0000, v{PB+i}""")
        bf16_round_pair(A, a0, a1, T + 16)
        A(f"""v_mul_f32 v{a0}, v{a0}, v9
        v_mul_f32 v{a1}, v{a1}, v9
        v_mul_f32 v{b0}, v{b0}, v10
        v_mul_f32 v{b1}, v{b1}, v10""")
        bf16_round_pair(A, a0, a1, T + 16)
        bf16_round_pair(A, b0, b1, T + 17)
        A(f"""v_add_f32 v{a0}, v{a0}, v{b0}
        v_add_f32 v{a1}, v{a1}, v{b1}
        v_cvt_pk_bf16_f32 v{T+i}, v{a0}, v{a1}""")
    stamp(A, 2, 3)
    A(f"""buffer_store_dwordx4 {vr(T,4)}, v8, s[48:51], s14 offen
    buffer_store_dwordx4 {vr(T+4,4)}, v8, s[48:51], s14 offen offset:16
    K3_END:
    s_endpgm""")


HEADER = """; Kernarg layout for this problem (88 bytes, ptrs only, base s[0:1]):
; @launch kernel=k1_kernel grid=(256,1,1) block=(512,1,1) lds=135168
; @launch kernel=k2_kernel grid=(256,1,1) block=(640,1,1) lds=163840
.amdgcn_target "amdgcn-amd-amdhsa--gfx950"
.text
"""


def kd(name, vgpr, sgpr=102):
    acc = (vgpr + 3) // 4 * 4
    return f""".amdhsa_kernel {name}
  .amdhsa_next_free_vgpr {vgpr}
  .amdhsa_next_free_sgpr {sgpr}
  .amdhsa_accum_offset {acc}
  .amdhsa_group_segment_fixed_size 0
  .amdhsa_kernarg_size 88
  .amdhsa_user_sgpr_count 2
  .amdhsa_user_sgpr_kernarg_segment_ptr 1
  .amdhsa_system_sgpr_workgroup_id_x 1
.end_amdhsa_kernel
"""


def main():
    out = HEADER
    for nm, fn in (("k1_kernel", gen_k1), ("k2_kernel", gen_k2)):
        A = Asm()
        A.lab = {"k1_kernel": 1000, "k2_kernel": 2000, "k3_kernel": 3000}[nm]
        fn(A)
        out += f".globl {nm}\n.p2align 8\n.type {nm},@function\n" + A.text()
    out += '.section .rodata,"a"\n'
    for nm, v in (("k1_kernel", 192), ("k2_kernel", 168)):
        if "stamp" in FL:
            v = 256 if nm != "k2_kernel" else 168
        out += ".p2align 6\n" + kd(nm, v)
    path = sys.argv[1] if len(sys.argv) > 1 else f"cdna_kernels/{NAME}.s"
    open(path, "w").write(out)


if __name__ == "__main__":
    main()
```

```python
import sys, struct, os
FL = set(os.environ.get("FL", "").split(","))
STFLAG = os.environ.get("STFLAG", "")

NAME = "gated_mix__mha_block__dense_activation_mish__prompt"

WS_QB = 0x000000
WS_QH = 0x200000
WS_QL = 0x400000
WS_KB = 0x600000
WS_VT = 0x800000
WS_ACT = 0xA00000
WS_OB = 0x1000000
WS_G = 0x1200000
WS_KN = 0x1210000
WS_PART = 0x1400000
WS_SIZE = 0x2800000

LOG2E = 1.4426950408889634


def f2u(x):
    return struct.unpack("<I", struct.pack("<f", x))[0]


class Asm:
    def __init__(self):
        self.lines = []
        self.lab = 0

    def __call__(self, s):
        for l in s.strip("\n").split("\n"):
            l = l.strip()
            if l:
                if "offset:" in l:
                    off = int(l.split("offset:")[1].split()[0], 0)
                    assert off < (4096 if l.startswith("buffer") else 65536), l
                if l.startswith("buffer_store") and STFLAG:
                    l = l + " " + STFLAG
                self.lines.append("    " + l if not l.endswith(":") else l)

    def label(self, p="L"):
        self.lab += 1
        return f"{p}_{self.lab}"

    def text(self):
        return "\n".join(self.lines) + "\n"


def vr(a, n):
    return f"v[{a}:{a+n-1}]"


def srd(A, d, lo, hi, size):
    A(f"""s_mov_b32 s{d}, s{lo}
    s_and_b32 s{d+1}, s{hi}, 0xffff
    s_mov_b32 s{d+2}, {size}
    s_mov_b32 s{d+3}, 0x20000""")


STAMP_BASE = 0x2400000


def stamp(A, kern, idx):
    if "stamp" not in FL:
        return
    r = 166 if kern == 1 else 254
    A(f"""s_memtime s[92:93]
    s_lshl_b32 s94, s2, 4
    s_add_u32 s94, s94, s3
    s_lshl_b32 s94, s94, 6
    s_add_u32 s94, s94, {STAMP_BASE + kern*0x40000 + idx*4}
    s_waitcnt lgkmcnt(0)
    v_mov_b32 v{r+1}, s92
    v_mov_b32 v{r}, 0
    buffer_store_dword v{r+1}, v{r}, s[44:47], s94 offen
    s_memrealtime s[92:93]
    s_waitcnt lgkmcnt(0)
    v_mov_b32 v{r+1}, s92
    s_add_u32 s94, s94, 0x100000
    buffer_store_dword v{r+1}, v{r}, s[44:47], s94 offen""")


def bf16_round_pair(A, a, b, tmp):
    A(f"""v_cvt_pk_bf16_f32 v{tmp}, v{a}, v{b}
    v_lshlrev_b32 v{a}, 16, v{tmp}
    v_and_b32 v{b}, 0xffff0000, v{tmp}""")


def gen_k1(A):
    BUF = 45056
    A("k1_kernel:")
    A("""s_cmp_ge_u32 s2, 256
    s_cbranch_scc1 K1_END
    s_load_dwordx16 s[16:31], s[0:1], 0
    s_load_dwordx2 s[32:33], s[0:1], 80
    v_lshrrev_b32 v2, 6, v0
    v_and_b32 v1, 63, v0
    s_nop 0
    v_readfirstlane_b32 s3, v2
    s_lshr_b32 s4, s2, 3
    s_and_b32 s5, s2, 7
    s_waitcnt lgkmcnt(0)""")
    srd(A, 36, 16, 17, 2048 * 512 * 2)
    srd(A, 44, 32, 33, WS_SIZE)
    stamp(A, 0, 0)
    A("""s_cmp_ge_u32 s2, 248
    s_cbranch_scc1 %s""" % ("K1_END" if "nogate" in FL else "K1_GATE"))
    srd(A, 48, 26, 27, 1376 * 2)
    A("""s_mov_b32 s42, %d
    s_mov_b32 s6, 2752
    s_cmp_lt_u32 s4, 16
    s_cselect_b32 s40, s18, s24
    s_cselect_b32 s41, s19, s25
    s_cselect_b32 s42, %d, s42
    s_mov_b32 s43, 0x20000
    s_cselect_b32 s6, 3072, s6
    s_cselect_b32 s8, 0, 16
    s_and_b32 s41, s41, 0xffff
    s_sub_u32 s8, s4, s8
    s_mul_i32 s7, s8, 96
    s_mul_i32 s9, s8, 3""" % (512 * 1376 * 2, 512 * 1536 * 2))
    A("""v_and_b32 v2, 31, v1
    v_lshrrev_b32 v3, 5, v1""")
    A("""v_lshrrev_b32 v4, 3, v1
    v_lshlrev_b32 v4, 10, v4
    v_and_b32 v5, 7, v1
    v_lshrrev_b32 v6, 4, v1
    v_xor_b32 v7, v5, v6
    v_lshl_add_u32 v10, v7, 4, v4
    v_add_u32 v6, 4, v6
    v_xor_b32 v7, v5, v6
    v_lshl_add_u32 v11, v7, 4, v4""")
    A("""s_add_u32 s10, s3, 8
    s_cmp_lt_u32 s3, 4
    s_cselect_b32 s10, s10, s3
    s_lshl_b32 s11, s7, 1
    s_mov_b32 s12, 0x15555556
    s_lshl_b32 s13, s3, 6
    s_lshl_b32 s14, s10, 6""")
    for qq in range(2):
        A(f"""v_add_u32 v4, s{13+qq}, v1
        v_mul_hi_u32 v5, v4, s12
        v_mul_u32_u24 v6, 12, v5
        v_sub_u32 v6, v4, v6
        v_mul_lo_u32 v5, v5, s6
        v_lshl_add_u32 v5, v6, 4, v5
        v_add_u32 v{12+qq}, s11, v5""")
    A("""s_lshl_b32 s58, s5, 18
    s_lshl_b32 s59, s3, 15
    s_add_u32 s58, s58, s59
    s_lshl_b32 s60, s3, 12
    s_lshl_b32 s61, s3, 10
    s_add_u32 s61, s61, 32768
    s_lshl_b32 s57, s10, 10
    s_add_u32 s57, s57, 32768
    s_lshl_b32 s62, s6, 6""")

    def dma_piece(c, b, i):
        if i < 4:
            A(f"""s_add_u32 m0, s60, {b*BUF + i*1024}
            s_add_u32 s63, s58, {i*8192 + c*128}
            buffer_load_dwordx4 v{10 + (i&1)}, s[36:39], s63 offen lds""")
        else:
            qq = i - 4
            A(f"""s_mul_i32 s63, s62, {c}
            s_add_u32 m0, s{61 if qq == 0 else 57}, {b*BUF}
            s_nop 0
            buffer_load_dwordx4 v{12+qq}, s[40:43], s63 offen lds""")

    def dma(c, b):
        for i in range(6):
            dma_piece(c, b, i)

    dma(0, 0)
    A("""s_cmp_lt_u32 s4, 16
    s_cbranch_scc1 K1_NOB1
    v_lshlrev_b32 v4, 3, v3
    v_add_u32 v4, s11, v4""")
    for t in range(3):
        for q in range(4):
            A(f"buffer_load_dwordx2 v[{32+t*8+q*2}:{32+t*8+q*2+1}], v4, s[48:51], 0 offen offset:{t*64+q*16}")
    A("K1_NOB1:")
    dma(1, 1)
    A("""v_lshrrev_b32 v4, 1, v2
    v_and_b32 v4, 7, v4
    v_lshlrev_b32 v5, 7, v2
    v_add_u32 v5, s60, v5""")
    for u in range(4):
        A(f"""v_add_u32 v6, {2*u}, v3
        v_xor_b32 v6, v6, v4
        v_lshl_add_u32 v{16+u}, v6, 4, v5""")
    for b in (1, 2):
        for u in range(4):
            A(f"v_add_u32 v{16+4*b+u}, {b*BUF}, v{16+u}")
    A("""v_bfe_u32 v4, v1, 2, 2
    v_lshl_add_u32 v4, v3, 3, v4
    v_mul_u32_u24 v4, 192, v4
    v_bfe_u32 v5, v1, 4, 1
    v_lshl_add_u32 v4, v5, 5, v4
    v_and_b32 v5, 3, v1
    v_lshl_add_u32 v4, v5, 3, v4""")
    for b in range(3):
        A(f"v_add_u32 v{28+b}, {32768 + b*BUF}, v4")

    XF = 56
    WF = 64
    ACC = 88
    T = 136
    stamp(A, 0, 12)
    A("""s_cmp_ge_u32 s4, 16
    s_cbranch_scc1 K1_INITB""")
    for i in range(48):
        A(f"v_mov_b32 v{ACC+i}, 0")
    A("""s_branch K1_INITD
    K1_INITB:
    s_waitcnt vmcnt(6)""")
    for t in range(3):
        for i in range(8):
            bq = 32 + t * 8 + (i >> 1) * 2 + (i & 1)
            A(f"""v_lshlrev_b32 v{ACC+t*16+2*i}, 16, v{bq}
            v_and_b32 v{ACC+t*16+2*i+1}, 0xffff0000, v{bq}""")
    A("K1_INITD:")

    def reads(b, u, st):
        A(f"ds_read_b128 {vr(XF+st*4,4)}, v{16+4*b+u}")
        for t in range(3):
            for rd in range(2):
                A(f"ds_read_b64_tr_b16 {vr(WF+st*12+t*4+rd*2,2)}, v{28+b} offset:{(16*u+4*rd)*192+64*t}")

    def mainloop(variant):
        for c in range(8):
            b = c % 3
            if c < 7:
                A("s_waitcnt vmcnt(6)")
            else:
                A("s_waitcnt vmcnt(0)")
            A("s_barrier")
            stamp(A, 0, 1 + c)
            reads(b, 0, 0)
            for u in range(4):
                st = u & 1
                if u < 3:
                    reads(b, u + 1, st ^ 1)
                    A("s_waitcnt lgkmcnt(7)")
                else:
                    A("s_waitcnt lgkmcnt(0)")
                for t in range(3):
                    acc = vr(ACC + t * 16, 16)
                    xf = vr(XF + st * 4, 4)
                    wf = vr(WF + st * 12 + t * 4, 4)
                    if variant[t] == "T":
                        A(f"v_mfma_f32_32x32x16_bf16 {acc}, {wf}, {xf}, {acc}")
                    else:
                        A(f"v_mfma_f32_32x32x16_bf16 {acc}, {xf}, {wf}, {acc}")
                    if c + 2 < 8 and t < 2 and u < 3:
                        dma_piece(c + 2, (c + 2) % 3, u * 2 + t)
        A("s_nop 15")
        A("s_nop 3")

    stamp(A, 0, 13)
    A("""s_cmp_eq_u32 s4, 10
    s_cbranch_scc1 K1_TTN
    s_cmp_lt_u32 s4, 11
    s_cbranch_scc1 K1_TTT
    s_cmp_lt_u32 s4, 16
    s_cbranch_scc1 K1_NNN
    K1_TTT:""")
    mainloop("TTT")
    A("s_branch K1_EPI")
    A("K1_TTN:")
    mainloop("TTN")
    A("s_branch K1_EPI")
    A("K1_NNN:")
    mainloop("NNN")
    A("K1_EPI:")
    stamp(A, 0, 9)

    A(f"""v_lshlrev_b32 v4, 4, v1
    v_bfe_u32 v5, v1, 4, 1
    v_lshlrev_b32 v5, 16, v5
    v_lshl_add_u32 v5, v3, 8, v5
    v_and_b32 v6, 15, v1
    v_lshl_add_u32 v5, v6, 4, v5""")
    A("""s_lshl_b32 s64, s5, 3
    s_add_u32 s64, s64, s3
    s_lshl_b32 s65, s64, 10""")
    CQ = f2u(0.25 * LOG2E)
    for t in range(3):
        lq, lk, lv, lf, ln = (A.label("K1E") for _ in range(5))
        a = ACC + t * 16
        A(f"""s_add_u32 s66, s9, {t}
        s_cmp_ge_u32 s4, 16
        s_cbranch_scc1 {lf}
        s_and_b32 s67, s66, 15
        s_lshl_b32 s67, s67, 17
        s_add_u32 s68, s65, s67
        s_cmp_lt_u32 s66, 16
        s_cbranch_scc1 {lq}
        s_cmp_lt_u32 s66, 32
        s_cbranch_scc1 {lk}
        {lv}:""")
        for i in range(8):
            A(f"v_cvt_pk_bf16_f32 v{T+i}, v{a+2*i}, v{a+2*i+1}")
        A(f"""s_add_u32 s68, s68, {WS_VT}
        buffer_store_dwordx4 {vr(T,4)}, v5, s[44:47], s68 offen
        buffer_store_dwordx4 {vr(T+4,4)}, v5, s[44:47], s68 offen offset:512
        s_nop 1
        s_branch {ln}""")
        A(f"{lk}:")
        for i in range(8):
            A(f"v_cvt_pk_bf16_f32 v{T+i}, v{a+2*i}, v{a+2*i+1}")
        A(f"""s_lshl_b32 s71, s64, 2
        s_add_u32 s68, s68, {WS_KB}
        s_add_u32 s69, s68, 65536
        buffer_store_dwordx4 {vr(T,4)}, v4, s[44:47], s68 offen
        buffer_store_dwordx4 {vr(T+4,4)}, v4, s[44:47], s69 offen""")
        for hd in range(2):
            n = T + 8 + hd
            for i in range(4):
                A(f"""v_lshlrev_b32 v{T+12}, 16, v{T+hd*4+i}
                v_and_b32 v{T+13}, 0xffff0000, v{T+hd*4+i}""")
                if i == 0:
                    A(f"v_mul_f32 v{n}, v{T+12}, v{T+12}")
                else:
                    A(f"v_fmac_f32 v{n}, v{T+12}, v{T+12}")
                A(f"v_fmac_f32 v{n}, v{T+13}, v{T+13}")
        for hd in range(2):
            n = T + 8 + hd
            A(f"""v_mov_b32 v{T+12}, v{n}
            s_nop 1
            v_permlane32_swap_b32 v{n}, v{T+12}
            s_nop 1
            v_add_f32 v{n}, v{n}, v{T+12}
            s_nop 1
            v_max_f32_dpp v{n}, v{n}, v{n} quad_perm:[1,0,3,2] row_mask:0xf bank_mask:0xf
            s_nop 1
            v_max_f32_dpp v{n}, v{n}, v{n} quad_perm:[2,3,0,1] row_mask:0xf bank_mask:0xf
            s_nop 1
            v_max_f32_dpp v{n}, v{n}, v{n} row_half_mirror row_mask:0xf bank_mask:0xf
            s_nop 1
            v_max_f32_dpp v{n}, v{n}, v{n} row_mirror row_mask:0xf bank_mask:0xf
            s_nop 1
            v_mov_b32 v{T+12}, v{n}
            s_nop 1
            v_permlane16_swap_b32 v{n}, v{T+12}
            s_nop 1
            v_max_f32 v{n}, v{n}, v{T+12}""")
        A(f"""s_lshr_b32 s69, s67, 8
        s_add_u32 s71, s71, s69
        s_add_u32 s71, s71, {WS_KN}
        v_mov_b32 v{T+12}, 0
        buffer_store_dword v{T+8}, v{T+12}, s[44:47], s71 offen
        buffer_store_dword v{T+9}, v{T+12}, s[44:47], s71 offen offset:256
        s_nop 1
        s_branch {ln}""")
        A(f"{lq}:")
        A(f"s_mov_b32 s70, 0x{CQ:08x}")
        for i in range(8):
            x0, x1 = a + 2 * i, a + 2 * i + 1
            A(f"""v_cvt_pk_bf16_f32 v{T+i}, v{x0}, v{x1}
            v_lshlrev_b32 v{x0}, 16, v{T+i}
            v_and_b32 v{x1}, 0xffff0000, v{T+i}
            v_mul_f32 v{x0}, s70, v{x0}
            v_mul_f32 v{x1}, s70, v{x1}
            v_cvt_pk_bf16_f32 v{T+i}, v{x0}, v{x1}""")
        A(f"""s_add_u32 s69, s68, 65536
        buffer_store_dwordx4 {vr(T,4)}, v4, s[44:47], s68 offen
        buffer_store_dwordx4 {vr(T+4,4)}, v4, s[44:47], s69 offen
        s_nop 1
        s_branch {ln}""")
        A(f"""{lf}:
        s_cmp_ge_u32 s66, 43
        s_cbranch_scc1 {ln}
        s_mov_b32 s70, 0x{f2u(LOG2E):08x}
        s_mov_b32 s71, 0x41a00000""")
        for i in range(8):
            x0, x1 = a + 2 * i, a + 2 * i + 1
            p = T + 24
            bf16_round_pair(A, x0, x1, p)
            A(f"""v_min_f32 v{p+1}, s71, v{x0}
            v_min_f32 v{p+2}, s71, v{x1}
            v_mul_f32 v{p+1}, s70, v{p+1}
            v_mul_f32 v{p+2}, s70, v{p+2}
            v_exp_f32 v{p+1}, v{p+1}
            v_exp_f32 v{p+2}, v{p+2}
            s_nop 0
            v_add_f32 v{p+3}, 2.0, v{p+1}
            v_add_f32 v{p+4}, 2.0, v{p+2}
            v_mul_f32 v{p+1}, v{p+1}, v{p+3}
            v_mul_f32 v{p+2}, v{p+2}, v{p+4}
            v_add_f32 v{p+3}, 2.0, v{p+1}
            v_add_f32 v{p+4}, 2.0, v{p+2}
            v_rcp_f32 v{p+3}, v{p+3}
            v_rcp_f32 v{p+4}, v{p+4}
            v_mul_f32 v{x0}, v{x0}, v{p+1}
            v_mul_f32 v{x1}, v{x1}, v{p+2}
            v_mul_f32 v{x0}, v{x0}, v{p+3}
            v_mul_f32 v{x1}, v{x1}, v{p+4}
            v_cvt_pk_bf16_f32 v{T+i}, v{x0}, v{x1}""")
        A(f"""s_mul_i32 s68, s64, 43
        s_add_u32 s68, s68, s66
        s_lshl_b32 s68, s68, 11
        s_add_u32 s68, s68, {WS_ACT}
        buffer_store_dwordx4 {vr(T,4)}, v4, s[44:47], s68 offen
        buffer_store_dwordx4 {vr(T+4,4)}, v4, s[44:47], s68 offen offset:1024
        s_nop 1""")
        A(f"{ln}:")
    stamp(A, 0, 10)
    if "stamp" in FL:
        A("s_waitcnt vmcnt(0)")
    stamp(A, 0, 11)
    A("s_branch K1_END")

    A("K1_GATE:")
    srd(A, 48, 30, 31, 1024)
    A("""v_and_b32 v2, 7, v1
    v_lshrrev_b32 v3, 3, v1
    v_lshlrev_b32 v4, 7, v2""")
    for q in range(8):
        A(f"buffer_load_dwordx4 {vr(32+4*q,4)}, v4, s[48:51], 0 offen offset:{q*16}")
    A("""v_lshl_add_u32 v5, v3, 10, v4
    s_lshl_b32 s58, s5, 18
    s_lshl_b32 s59, s3, 15
    s_add_u32 s58, s58, s59""")
    for it in range(2):
        A(f"s_add_u32 s59, s58, {it*8192}")
        for q in range(8):
            A(f"buffer_load_dwordx4 {vr(128+it*32+4*q,4)}, v5, s[36:39], s59 offen offset:{q*16}")
    A("s_waitcnt vmcnt(16)")
    for d in range(32):
        A(f"""v_lshlrev_b32 v{64+2*d}, 16, v{32+d}
        v_and_b32 v{65+2*d}, 0xffff0000, v{32+d}""")
    A(f"""s_lshl_b32 s60, s5, 10
    s_lshl_b32 s61, s3, 7
    s_add_u32 s60, s60, s61
    s_add_u32 s60, s60, {WS_G}
    v_lshlrev_b32 v6, 2, v3
    s_mov_b32 s70, 0x{f2u(-LOG2E):08x}""")
    for it in range(4):
        xb = 128 + (it & 1) * 32
        A("""v_mov_b32 v8, 0
        v_mov_b32 v9, 0""")
        A("s_waitcnt vmcnt(8)" if it < 3 else "s_waitcnt vmcnt(0)")
        if it >= 1:
            pass
        for d in range(32):
            A(f"""v_lshlrev_b32 v10, 16, v{xb+d}
            v_and_b32 v11, 0xffff0000, v{xb+d}
            v_mul_f32 v10, v10, v{64+2*d}
            v_mul_f32 v11, v11, v{65+2*d}
            v_cvt_pk_bf16_f32 v12, v10, v11
            v_lshlrev_b32 v10, 16, v12
            v_and_b32 v11, 0xffff0000, v12
            v_add_f32 v8, v8, v10
            v_add_f32 v9, v9, v11""")
        if it + 2 < 4:
            A(f"s_add_u32 s59, s58, {(it+2)*8192}")
            for q in range(8):
                A(f"buffer_load_dwordx4 {vr(xb+4*q,4)}, v5, s[36:39], s59 offen offset:{q*16}")
        A(f"""v_add_f32 v8, v8, v9
        s_nop 1
        v_add_f32_dpp v8, v8, v8 quad_perm:[1,0,3,2] row_mask:0xf bank_mask:0xf
        s_nop 1
        v_add_f32_dpp v8, v8, v8 quad_perm:[2,3,0,1] row_mask:0xf bank_mask:0xf
        s_nop 1
        v_add_f32_dpp v8, v8, v8 row_half_mirror row_mask:0xf bank_mask:0xf
        s_nop 1
        v_cvt_pk_bf16_f32 v9, v8, v8
        v_lshlrev_b32 v8, 16, v9
        v_mul_f32 v8, s70, v8
        v_exp_f32 v8, v8
        s_nop 0
        v_add_f32 v8, 1.0, v8
        v_rcp_f32 v8, v8
        s_nop 0
        v_cvt_pk_bf16_f32 v9, v8, v8
        v_lshlrev_b32 v13, 16, v9
        buffer_store_dword v13, v6, s[44:47], s60 offen offset:{it*32}""")
    A("""K1_END:
    s_endpgm""")


def gen_k2(A):
    QB = 8
    KF = 20
    VF = 36
    P = 52
    NEGM = 68
    SA, SB = 84, 100
    O = 116
    M0, M1 = 132, 133
    A("k2_kernel:")
    A("""s_cmp_ge_u32 s2, 256
    s_cbranch_scc1 K2_END
    s_load_dwordx2 s[32:33], s[0:1], 80
    s_load_dwordx2 s[28:29], s[0:1], 48
    s_load_dwordx2 s[34:35], s[0:1], 16
    s_load_dwordx4 s[36:39], s[0:1], 64
    v_lshrrev_b32 v2, 6, v0
    v_and_b32 v1, 63, v0
    s_nop 0
    v_readfirstlane_b32 s3, v2
    s_and_b32 s4, s2, 7
    s_lshl_b32 s4, s4, 2
    s_bfe_u32 s5, s2, 0x20003
    s_add_u32 s4, s4, s5
    s_lshr_b32 s5, s2, 5
    s_waitcnt lgkmcnt(0)""")
    srd(A, 44, 32, 33, WS_SIZE)
    stamp(A, 1, 0)
    A("""v_lshlrev_b32 v2, 4, v1
    v_mov_b32 v3, 0x23000
    v_mov_b32 v4, 0
    v_mov_b32 v5, 0
    ds_write_b64 v3, v[4:5]
    ds_write_b64 v3, v[4:5] offset:8
    ds_write_b64 v3, v[4:5] offset:16
    s_lshl_b32 s26, s5, 2
    s_lshr_b32 s27, s4, 3
    s_add_u32 s26, s26, s27
    s_and_b32 s27, s4, 7
    s_waitcnt lgkmcnt(0)
    s_barrier
    s_cmp_ge_u32 s3, 8
    s_cbranch_scc1 K2_FFN""")
    A(f"""s_lshl_b32 s6, s4, 16
    s_lshl_b32 s7, s3, 13
    s_add_u32 s8, s6, s7
    s_add_u32 s9, s8, {WS_KB}
    s_add_u32 s10, s8, {WS_VT}""")
    A(f"""s_lshl_b32 s12, s5, 3
    s_add_u32 s12, s12, s3
    s_lshl_b32 s13, s12, 10
    s_add_u32 s13, s13, s6
    buffer_load_dwordx4 {vr(QB,4)}, v2, s[44:47], s13 offen
    s_lshl_b32 s14, s4, 8
    s_add_u32 s14, s14, {WS_KN}
    v_lshlrev_b32 v3, 2, v1
    buffer_load_dword v12, v3, s[44:47], s14 offen""")
    A(f"""s_lshl_b32 s7, s3, 11
    s_add_u32 s9, s6, s7
    s_add_u32 s10, s9, {WS_VT}
    s_add_u32 s9, s9, {WS_KB}""")
    for q in range(2):
        A(f"""s_add_u32 m0, s7, {q*1024}
        s_add_u32 s11, s9, {q*1024}
        buffer_load_dwordx4 v2, s[44:47], s11 offen lds
        s_add_u32 m0, s7, {65536+q*1024}
        s_add_u32 s11, s10, {q*1024}
        buffer_load_dwordx4 v2, s[44:47], s11 offen lds""")
    A(f"""s_mul_i32 s7, s3, 6144
    s_add_u32 s7, s7, 16384
    s_add_u32 s9, s6, s7
    s_add_u32 s10, s9, {WS_VT}
    s_add_u32 s9, s9, {WS_KB}""")
    for q in range(6):
        A(f"""s_add_u32 m0, s7, {q*1024}
        s_add_u32 s11, s9, {q*1024}
        buffer_load_dwordx4 v2, s[44:47], s11 offen lds
        s_add_u32 m0, s7, {65536+q*1024}
        s_add_u32 s11, s10, {q*1024}
        buffer_load_dwordx4 v2, s[44:47], s11 offen lds""")

    def sync8(idx, vm):
        l = A.label("SY")
        A(f"""s_waitcnt vmcnt({vm})
        v_mov_b32 v134, 0x23000
        v_mov_b32 v135, 1
        s_mov_b64 exec, 1
        ds_add_u32 v134, v135 offset:{idx*4}
        s_mov_b64 exec, -1
        {l}:
        ds_read_b32 v135, v134 offset:{idx*4}
        s_waitcnt lgkmcnt(0)
        v_readfirstlane_b32 s21, v135
        s_cmp_lt_u32 s21, 8
        s_cbranch_scc1 {l}""")
    A("""v_and_b32 v3, 31, v1
    v_lshrrev_b32 v4, 5, v1
    v_and_b32 v5, 15, v1
    v_lshlrev_b32 v5, 4, v5
    v_lshl_add_u32 v5, v4, 8, v5
    v_add_u32 v13, 0x10000, v5
    v_and_b32 v4, 0x1b, v3
    v_mov_b32 v5, 0x3f803f80
    v_cmp_eq_u32 vcc, 16, v4
    s_nop 1
    v_cndmask_b32 v5, 0, v5, vcc
    s_mov_b32 s30, 0x0000ffff
    s_mov_b32 s31, 0x0000ffff
    s_mov_b32 s23, 0
    s_mov_b32 s25, 0x07060302""")
    for r in range(16):
        A(f"v_mov_b32 v{VF+r}, v5")
    A("s_waitcnt vmcnt(16)")
    for i in range(4):
        A(f"""v_lshlrev_b32 v14, 16, v{QB+i}
        v_and_b32 v15, 0xffff0000, v{QB+i}""")
        A("v_mul_f32 v16, v14, v14" if i == 0 else "v_fmac_f32 v16, v14, v14")
        A("v_fmac_f32 v16, v15, v15")
    A("""v_mov_b32 v14, v16
    s_nop 1
    v_permlane32_swap_b32 v16, v14
    s_nop 1
    v_add_f32 v16, v16, v14
    v_max_f32_dpp v12, v12, v12 quad_perm:[1,0,3,2] row_mask:0xf bank_mask:0xf
    s_nop 1
    v_max_f32_dpp v12, v12, v12 quad_perm:[2,3,0,1] row_mask:0xf bank_mask:0xf
    s_nop 1
    v_max_f32_dpp v12, v12, v12 row_half_mirror row_mask:0xf bank_mask:0xf
    s_nop 1
    v_max_f32_dpp v12, v12, v12 row_mirror row_mask:0xf bank_mask:0xf
    s_nop 1
    v_mov_b32 v14, v12
    s_nop 1
    v_permlane16_swap_b32 v12, v14
    s_nop 1
    v_max_f32 v12, v12, v14
    s_nop 1
    v_mov_b32 v14, v12
    s_nop 1
    v_permlane32_swap_b32 v12, v14
    s_nop 1
    v_max_f32 v12, v12, v14
    v_mul_f32 v16, v16, v12
    v_sqrt_f32 v16, v16
    s_nop 0""")
    A(f"v_mul_f32 v{M0}, 0x{f2u(-(1.0+2.0**-7)):08x}, v16")
    sync8(0, 12)
    stamp(A, 1, 1)
    S = [SA, SB]
    A("K2_P2START:")
    for r in range(16):
        A(f"v_mov_b32 v{NEGM+r}, v{M0}")
        A(f"v_mov_b32 v{P+r}, 0")
        A(f"v_mov_b32 v{O+r}, 0")
    A(f"""v_mov_b32 v6, v2
    v_mov_b32 v7, v13
    ds_read_b128 {vr(KF,4)}, v6
    ds_read_b128 {vr(KF+4,4)}, v6 offset:1024
    s_waitcnt lgkmcnt(1)
    v_mfma_f32_32x32x16_bf16 {vr(SA,16)}, {vr(KF,4)}, {vr(QB,4)}, {vr(NEGM,16)}
    s_nop 7
    s_nop 3
    s_mov_b32 s20, 0
    K2_P2:
    s_cmp_eq_u32 s20, 3
    s_cbranch_scc0 K2_NOSYNC
    s_cmp_eq_u32 s23, 0
    s_cbranch_scc0 K2_NOSYNC""")
    sync8(1, 0)
    A("K2_NOSYNC:")
    for t in range(4):
        X, Y = S[t & 1], S[(t + 1) & 1]
        vcur, vprv = VF + (t & 1) * 8, VF + ((t + 1) & 1) * 8
        pcur, pprv = P + (t & 1) * 8, P + ((t + 1) & 1) * 8
        kn = KF + ((t + 1) % 4) * 4
        A(f"""ds_read_b128 {vr(KF+((t+2)%4)*4,4)}, v6 offset:{(t+2)*1024}
        s_mov_b64 exec, s[30:31]
        ds_read_b128 {vr(vcur,4)}, v7 offset:{t*1024}
        ds_read_b128 {vr(vcur+4,4)}, v7 offset:{t*1024+512}
        s_mov_b64 exec, -1
        s_waitcnt lgkmcnt(3)""")
        def mf(x):
            if "nomfma" not in FL:
                A(x)
        def ex(r):
            if "noexp" in FL:
                A(f"v_mov_b32 v{X+r}, v{X+r}")
            elif "noexp2" not in FL:
                A(f"v_exp_f32 v{X+r}, v{X+r}")
        mf(f"v_mfma_f32_32x32x16_bf16 {vr(Y,16)}, {vr(kn,4)}, {vr(QB,4)}, {vr(NEGM,16)}")
        for r in range(0, 5):
            ex(r)
        mf(f"v_mfma_f32_32x32x16_bf16 {vr(O,16)}, {vr(vprv,4)}, {vr(pprv,4)}, {vr(O,16)}")
        for r in range(5, 10):
            ex(r)
        mf(f"v_mfma_f32_32x32x16_bf16 {vr(O,16)}, {vr(vprv+4,4)}, {vr(pprv+4,4)}, {vr(O,16)}")
        for r in range(10, 16):
            ex(r)
        if "nocvt" not in FL:
            for i in range(8):
                if "perm" in FL:
                    A(f"v_perm_b32 v{pcur+i}, v{X+2*i+1}, v{X+2*i}, s25")
                else:
                    A(f"v_cvt_pk_bf16_f32 v{pcur+i}, v{X+2*i}, v{X+2*i+1}")
    A("""v_add_u32 v6, 0x1000, v6
    v_add_u32 v7, 0x1000, v7
    s_add_u32 s20, s20, 1
    s_cmp_lt_u32 s20, 16
    s_cbranch_scc1 K2_P2""")
    A(f"""s_waitcnt lgkmcnt(0)
    s_nop 1
    v_mfma_f32_32x32x16_bf16 {vr(O,16)}, {vr(VF+8,4)}, {vr(P+8,4)}, {vr(O,16)}
    v_mfma_f32_32x32x16_bf16 {vr(O,16)}, {vr(VF+12,4)}, {vr(P+12,4)}, {vr(O,16)}
    s_nop 15
    s_nop 3""")
    A(f"""s_mov_b32 s24, 0x27000000
    v_cmp_nle_f32 vcc, s24, v{O+8}
    s_cmp_eq_u32 s23, 0
    s_cbranch_scc0 K2_FIN
    s_cbranch_vccz K2_FIN
    s_mov_b32 s23, 1""" if "forcefb" not in FL and "nofb" not in FL else "s_branch K2_FIN" if "nofb" in FL else f"""s_cmp_eq_u32 s23, 0
    s_cbranch_scc0 K2_FIN
    s_mov_b32 s23, 1""")
    A(f"""v_mov_b32 v{M0}, 0xff800000
    v_mov_b32 v{M1}, 0xff800000
    v_mov_b32 v6, v2
    ds_read_b128 {vr(KF,4)}, v6
    ds_read_b128 {vr(KF+4,4)}, v6 offset:1024
    s_waitcnt lgkmcnt(1)
    v_mfma_f32_32x32x16_bf16 {vr(SA,16)}, {vr(KF,4)}, {vr(QB,4)}, 0
    s_nop 7
    s_mov_b32 s20, 0
    K2_P1:""")
    for t in range(4):
        X, Y = S[t & 1], S[(t + 1) & 1]
        A(f"""ds_read_b128 {vr(KF+((t+2)%4)*4,4)}, v6 offset:{(t+2)*1024}
        s_waitcnt lgkmcnt(1)
        v_mfma_f32_32x32x16_bf16 {vr(Y,16)}, {vr(KF+((t+1)%4)*4,4)}, {vr(QB,4)}, 0
        s_nop 1""")
        for i in range(4):
            A(f"""v_max3_f32 v{M0}, v{M0}, v{X+4*i}, v{X+4*i+1}
            v_max3_f32 v{M1}, v{M1}, v{X+4*i+2}, v{X+4*i+3}""")
    A(f"""v_add_u32 v6, 0x1000, v6
    s_add_u32 s20, s20, 1
    s_cmp_lt_u32 s20, 16
    s_cbranch_scc1 K2_P1
    v_max_f32 v{M0}, v{M0}, v{M1}
    s_nop 1
    v_mov_b32 v{M1}, v{M0}
    s_nop 1
    v_permlane32_swap_b32 v{M0}, v{M1}
    s_nop 1
    v_max_f32 v{M0}, v{M0}, v{M1}
    v_sub_f32 v{M0}, 0, v{M0}
    s_waitcnt lgkmcnt(0)
    s_nop 7
    s_nop 7
    s_branch K2_P2START
    K2_FIN:""")
    stamp(A, 1, 3)
    A(f"""v_rcp_f32 v{M0}, v{O+8}
    s_nop 0""")
    for r in range(8):
        A(f"v_mul_f32 v{O+r}, v{O+r}, v{M0}")
    for i in range(4):
        A(f"v_cvt_pk_bf16_f32 v{P+i}, v{O+2*i}, v{O+2*i+1}")
    A(f"""s_lshl_b32 s13, s12, 5
    s_add_u32 s13, s13, s4
    s_lshl_b32 s13, s13, 10
    s_add_u32 s13, s13, {WS_OB}
    buffer_store_dwordx4 {vr(P,4)}, v2, s[44:47], s13 offen""")
    BFT, AFT, ACT_, TT = 20, 84, 100, 120
    srd(A, 48, 34, 35, 512 * 512 * 2)
    srd(A, 52, 38, 39, 256)
    srd(A, 56, 36, 37, 2048 * 512 * 2)
    sync8(2, 0)
    stamp(A, 1, 4)
    A("""s_lshl_b32 s60, s5, 5
    v_mov_b32 v10, s60
    v_mov_b32 v11, 1
    s_cmp_eq_u32 s3, 0
    s_cbranch_scc0 K2T_NOARR
    s_mov_b64 exec, 1
    buffer_atomic_add v11, v10, s[52:55], 0 offen sc1
    s_mov_b64 exec, -1
    K2T_NOARR:""")
    A("""v_lshrrev_b32 v4, 3, v1
    v_lshlrev_b32 v4, 10, v4
    v_bfe_u32 v5, v1, 4, 1
    v_lshlrev_b32 v5, 2, v5
    v_and_b32 v6, 7, v1
    v_xor_b32 v5, v5, v6
    v_lshl_add_u32 v4, v5, 4, v4
    s_lshl_b32 s9, s27, 7
    v_add_u32 v8, s9, v4
    s_lshl_b32 s14, s3, 16
    s_lshl_b32 s15, s3, 13""")
    for q in range(8):
        A(f"""s_add_u32 m0, s15, {q*1024}
        s_add_u32 s16, s14, {q*8192}
        buffer_load_dwordx4 v8, s[48:51], s16 offen lds""")
    A("""s_and_b32 s61, s3, 1
    s_bfe_u32 s62, s3, 0x10001
    v_mov_b32 v134, 0x23000
    v_mov_b32 v135, 1
    s_waitcnt vmcnt(0)
    s_mov_b64 exec, 1
    ds_add_u32 v134, v135 offset:12
    s_mov_b64 exec, -1
    s_cmp_ge_u32 s3, 4
    s_cbranch_scc1 K2_END""")
    A("""v_bfe_u32 v5, v1, 2, 2
    v_lshrrev_b32 v6, 5, v1
    v_lshl_add_u32 v6, v6, 2, v5
    v_lshlrev_b32 v6, 7, v6
    v_bfe_u32 v7, v1, 0, 1
    v_lshl_add_u32 v6, v7, 5, v6
    v_bfe_u32 v7, v1, 4, 1
    v_lshl_add_u32 v6, v7, 4, v6
    v_bfe_u32 v7, v1, 1, 1
    v_lshl_add_u32 v6, v7, 3, v6
    v_bfe_u32 v7, v1, 3, 1
    v_xor_b32 v7, s62, v7
    v_lshl_add_u32 v3, v7, 6, v6""")
    A(f"""s_lshl_b32 s63, s26, 6
    s_lshl_b32 s64, s61, 5
    s_add_u32 s63, s63, s64
    v_and_b32 v7, 31, v1
    v_add_u32 v7, s63, v7
    v_lshlrev_b32 v9, 2, v7
    s_mov_b32 s64, {WS_G}
    buffer_load_dword v12, v9, s[44:47], s64 offen""")
    for i in range(16):
        A(f"v_mov_b32 v{ACT_+i}, 0")
    A(f"""s_lshl_b32 s16, s26, 1
    s_add_u32 s16, s16, s61
    s_lshl_b32 s16, s16, 15
    s_add_u32 s16, s16, {WS_OB}""")
    A("""s_cmp_eq_u32 s3, 0
    s_cbranch_scc0 K2T_WAITL
    K2T_POLL:
    buffer_load_dword v11, v10, s[52:55], 0 offen sc1
    s_waitcnt vmcnt(0)
    v_readfirstlane_b32 s21, v11
    s_cmp_ge_u32 s21, 32
    s_cbranch_scc1 K2T_GO
    s_sleep 1
    s_branch K2T_POLL
    K2T_GO:
    v_mov_b32 v135, 1
    ds_write_b32 v134, v135 offset:16
    s_branch K2T_RDY
    K2T_WAITL:
    ds_read_b32 v135, v134 offset:16
    s_waitcnt lgkmcnt(0)
    v_readfirstlane_b32 s21, v135
    s_cmp_eq_u32 s21, 0
    s_cbranch_scc0 K2T_RDY
    s_sleep 1
    s_branch K2T_WAITL
    K2T_RDY:""")
    stamp(A, 1, 5)
    for bt in range(2):
        for hd in range(16):
            if hd % 4 == 0:
                A(f"s_add_u32 s17, s16, {(bt*16+hd)*1024}")
            A(f"buffer_load_dwordx4 {vr(BFT+hd*4,4)}, v2, s[44:47], s17 offen offset:{(hd%4)*1024} sc1")
        if bt == 0:
            A("""K2T_WAIT3:
            ds_read_b64 v[136:137], v134 offset:12
            ds_read_b32 v135, v134 offset:20
            s_waitcnt lgkmcnt(0)
            v_readfirstlane_b32 s21, v136
            v_readfirstlane_b32 s22, v135
            s_cmp_ge_u32 s21, 8
            s_cbranch_scc0 K2T_WAIT3
            s_cmp_ge_u32 s22, 2
            s_cbranch_scc0 K2T_WAIT3""")
        for g4 in range(4):
            for kk in range(4):
                ks = bt * 16 + g4 * 4 + kk
                c, u = ks >> 1, ks & 1
                for rd in range(2):
                    A(f"ds_read_b64_tr_b16 {vr(AFT+kk*4+rd*2,2)}, v3 offset:{c*4096+(16*u+8*rd)*128}")
            A(f"s_waitcnt vmcnt({12-4*g4})")
            for kk in range(4):
                A(f"s_waitcnt lgkmcnt({6-2*kk})")
                acc = vr(ACT_, 16)
                A(f"v_mfma_f32_32x32x16_bf16 {acc}, {vr(AFT+kk*4,4)}, {vr(BFT+(g4*4+kk)*4,4)}, {acc}")
        if bt == 0:
            A("s_nop 7")
    stamp(A, 1, 6)
    A(f"""s_lshl_b32 s14, s62, 14
    s_lshl_b32 s15, s61, 11
    s_add_u32 s14, s14, s15
    s_add_u32 s14, s14, 0x20000
    v_lshlrev_b32 v5, 5, v1
    v_add_u32 v5, s14, v5
    ds_read_b128 {vr(TT+16,4)}, v5
    ds_read_b128 {vr(TT+20,4)}, v5 offset:16""")
    A("""v_lshlrev_b32 v8, 10, v7
    v_lshrrev_b32 v10, 5, v1
    v_lshl_add_u32 v8, v10, 5, v8
    s_lshl_b32 s14, s27, 7
    s_lshl_b32 s15, s62, 6
    s_add_u32 s14, s14, s15
    v_sub_f32 v10, 1.0, v12
    v_cvt_pk_bf16_f32 v11, v10, v10
    v_lshlrev_b32 v10, 16, v11
    s_waitcnt lgkmcnt(0)
    s_nop 7""")
    for i in range(8):
        a0, a1 = ACT_ + 2 * i, ACT_ + 2 * i + 1
        b0, b1 = 36 + 2 * i, 36 + 2 * i + 1
        A(f"""v_lshlrev_b32 v{b0}, 16, v{TT+16+i}
        v_and_b32 v{b1}, 0xffff0000, v{TT+16+i}""")
        bf16_round_pair(A, a0, a1, TT + 8)
        A(f"""v_mul_f32 v{a0}, v{a0}, v12
        v_mul_f32 v{a1}, v{a1}, v12
        v_mul_f32 v{b0}, v{b0}, v10
        v_mul_f32 v{b1}, v{b1}, v10""")
        bf16_round_pair(A, a0, a1, TT + 8)
        bf16_round_pair(A, b0, b1, TT + 9)
        A(f"""v_add_f32 v{a0}, v{a0}, v{b0}
        v_add_f32 v{a1}, v{a1}, v{b1}
        v_cvt_pk_bf16_f32 v{TT+i}, v{a0}, v{a1}""")
    stamp(A, 1, 7)
    A(f"""buffer_store_dwordx4 {vr(TT,4)}, v8, s[56:59], s14 offen
    buffer_store_dwordx4 {vr(TT+4,4)}, v8, s[56:59], s14 offen offset:16
    s_branch K2_END""")

    NS = 6
    BF = 16
    AF = 112
    ACC = 120
    A("K2_FFN:")
    srd(A, 40, 28, 29, 1376 * 512 * 2)
    A(f"""s_sub_u32 s3, s3, 8
    s_mov_b32 s4, s26
    s_mov_b32 s5, s27
    s_lshl_b32 s8, s4, 1
    s_mul_i32 s10, s8, 86
    s_lshl_b32 s10, s10, 10
    s_add_u32 s10, s10, {WS_ACT}
    s_add_u32 s11, s10, {86*1024}
    s_mov_b32 s14, 0
    s_lshl_b32 s15, s3, 14
    s_add_u32 s15, s15, 0x20000""")
    A("""v_lshrrev_b32 v4, 2, v1
    v_lshlrev_b32 v4, 10, v4
    v_and_b32 v6, 3, v1
    v_lshl_add_u32 v4, v6, 4, v4
    s_lshl_b32 s9, s5, 7
    s_lshl_b32 s12, s3, 6
    s_add_u32 s9, s9, s12
    v_add_u32 v8, s9, v4""")
    A("""v_bfe_u32 v5, v1, 2, 2
    v_lshrrev_b32 v6, 5, v1
    v_lshl_add_u32 v6, v6, 2, v5
    v_lshlrev_b32 v6, 6, v6
    v_add_u32 v6, s15, v6
    v_bfe_u32 v7, v1, 0, 1
    v_lshl_add_u32 v6, v7, 5, v6
    v_bfe_u32 v7, v1, 4, 1
    v_lshl_add_u32 v6, v7, 4, v6
    v_bfe_u32 v7, v1, 1, 1
    v_lshl_add_u32 v3, v7, 3, v6""")
    for i in range(32):
        A(f"v_mov_b32 v{ACC+i}, 0")

    def issue(stg):
        for q in range(2):
            A(f"""s_add_u32 m0, s15, {stg*2048 + q*1024}
            s_add_u32 s52, s14, {q*16384}
            buffer_load_dwordx4 v8, s[40:43], s52 offen lds""")
        for st in range(2):
            for u in range(2):
                A(f"buffer_load_dwordx4 {vr(BF+stg*16+(u*2+st)*4,4)}, v2, s[44:47], s{10+st} offen offset:{u*1024}")
        A("""s_add_u32 s14, s14, 32768
        s_add_u32 s10, s10, 2048
        s_add_u32 s11, s11, 2048""")

    for stg in range(NS - 1):
        issue(stg)
    A("""s_mov_b32 s53, 0
    K2F_LOOP:""")
    for stg in range(NS):
        issue((stg + NS - 1) % NS)
        A(f"s_waitcnt vmcnt({6*(NS-1)})")
        for u in range(2):
            for rd in range(2):
                A(f"ds_read_b64_tr_b16 {vr(AF+u*4+rd*2,2)}, v3 offset:{stg*2048+(16*u+8*rd)*64}")
        for u in range(2):
            A(f"s_waitcnt lgkmcnt({2 if u == 0 else 0})")
            for st in range(2):
                acc = vr(ACC + st * 16, 16)
                A(f"v_mfma_f32_32x32x16_bf16 {acc}, {vr(AF+u*4,4)}, {vr(BF+stg*16+(u*2+st)*4,4)}, {acc}")
        A("""s_add_u32 s53, s53, 1
        s_cmp_ge_u32 s53, 43
        s_cbranch_scc1 K2F_DONE""")
    A("s_branch K2F_LOOP")
    A(f"""K2F_DONE:
    s_waitcnt vmcnt(0)
    v_lshlrev_b32 v4, 5, v1
    v_add_u32 v4, s15, v4
    s_nop 15
    s_nop 3""")
    for st in range(2):
        for i in range(8):
            A(f"v_cvt_pk_bf16_f32 v{BF+st*8+i}, v{ACC+st*16+2*i}, v{ACC+st*16+2*i+1}")
        A(f"""ds_write_b128 v4, {vr(BF+st*8,4)} offset:{st*2048}
        ds_write_b128 v4, {vr(BF+st*8+4,4)} offset:{st*2048+16}""")
    A("""s_waitcnt lgkmcnt(0)
    v_mov_b32 v5, 0x23000
    v_mov_b32 v6, 1
    s_mov_b64 exec, 1
    ds_add_u32 v5, v6 offset:20
    s_mov_b64 exec, -1
    s_waitcnt lgkmcnt(0)
    K2_END:
    s_endpgm""")


def gen_k3(A):
    BF = 16
    AF = 80
    ACC = 96
    PB = 160
    T = 224
    A("k3_kernel:")
    A("""s_cmp_ge_u32 s2, 256
    s_cbranch_scc1 K3_END
    s_load_dwordx2 s[20:21], s[0:1], 16
    s_load_dwordx2 s[32:33], s[0:1], 80
    s_load_dwordx2 s[34:35], s[0:1], 64
    v_lshrrev_b32 v2, 6, v0
    v_and_b32 v1, 63, v0
    s_nop 0
    v_readfirstlane_b32 s3, v2
    s_lshr_b32 s4, s2, 3
    s_and_b32 s5, s2, 7
    s_waitcnt lgkmcnt(0)""")
    srd(A, 44, 32, 33, WS_SIZE)
    srd(A, 48, 34, 35, 2048 * 512 * 2)
    srd(A, 40, 20, 21, 512 * 512 * 2)
    stamp(A, 2, 0)
    A(f"""s_lshl_b32 s8, s4, 6
    s_lshl_b32 s13, s3, 3
    s_add_u32 s10, s8, s13
    s_lshl_b32 s10, s10, 10
    s_add_u32 s10, s10, {WS_OB}
    s_add_u32 s11, s10, 32768
    s_lshl_b32 s14, s3, 17
    s_lshl_b32 s15, s3, 14""")
    A("""v_lshrrev_b32 v4, 3, v1
    v_lshlrev_b32 v4, 10, v4
    v_bfe_u32 v5, v1, 4, 1
    v_lshlrev_b32 v5, 2, v5
    v_and_b32 v6, 7, v1
    v_xor_b32 v5, v5, v6
    v_lshl_add_u32 v4, v5, 4, v4
    s_lshl_b32 s9, s5, 7
    v_add_u32 v2, s9, v4""")
    A("""v_bfe_u32 v5, v1, 2, 2
    v_lshrrev_b32 v6, 5, v1
    v_lshl_add_u32 v6, v6, 2, v5
    v_lshlrev_b32 v6, 7, v6
    v_add_u32 v6, s15, v6
    v_bfe_u32 v7, v1, 0, 1
    v_lshl_add_u32 v6, v7, 5, v6
    v_bfe_u32 v7, v1, 4, 1
    v_lshl_add_u32 v6, v7, 4, v6
    v_bfe_u32 v7, v1, 1, 1
    v_lshl_add_u32 v6, v7, 3, v6
    v_bfe_u32 v7, v1, 3, 1
    v_lshl_add_u32 v3, v7, 6, v6
    v_xor_b32 v7, 1, v7
    v_lshl_add_u32 v4, v7, 6, v6
    v_lshlrev_b32 v5, 4, v1""")

    for stg in range(4):
        for q in range(4):
            A(f"""s_add_u32 m0, s15, {stg*4096 + q*1024}
            s_add_u32 s52, s14, {stg*32768 + q*8192}
            buffer_load_dwordx4 v2, s[40:43], s52 offen lds""")
        for st in range(2):
            for u in range(2):
                A(f"buffer_load_dwordx4 {vr(BF+stg*16+(u*2+st)*4,4)}, v5, s[44:47], s{10+st} offen offset:{u*1024}")
        A("""s_add_u32 s10, s10, 2048
        s_add_u32 s11, s11, 2048""")
    A(f"""s_lshl_b32 s16, s2, 2
    s_add_u32 s16, s16, s3
    s_lshl_b32 s16, s16, 11
    s_add_u32 s16, s16, {WS_PART}
    v_lshlrev_b32 v6, 5, v1
    buffer_load_dwordx4 {vr(PB,4)}, v6, s[44:47], s16 offen
    buffer_load_dwordx4 {vr(PB+4,4)}, v6, s[44:47], s16 offen offset:16""")
    A(f"""s_and_b32 s8, s3, 1
    s_lshr_b32 s9, s3, 1
    s_lshl_b32 s10, s4, 6
    s_lshl_b32 s11, s8, 5
    s_add_u32 s10, s10, s11
    v_and_b32 v7, 31, v1
    v_add_u32 v7, s10, v7
    v_lshlrev_b32 v8, 2, v7
    s_mov_b32 s12, {WS_G}
    buffer_load_dword v9, v8, s[44:47], s12 offen""")
    for i in range(64):
        A(f"v_mov_b32 v{ACC+i}, 0")
    stamp(A, 2, 1)
    for stg in range(4):
        A(f"s_waitcnt vmcnt({3 + 8*(3-stg)})")
        for u in range(2):
            for nt in range(2):
                for rd in range(2):
                    A(f"ds_read_b64_tr_b16 {vr(AF+(u*2+nt)*4+rd*2,2)}, v{3+nt} offset:{stg*4096+(16*u+8*rd)*128}")
        for u in range(2):
            A(f"s_waitcnt lgkmcnt({4 if u == 0 else 0})")
            for nt in range(2):
                for st in range(2):
                    acc = vr(ACC + (nt * 2 + st) * 16, 16)
                    A(f"v_mfma_f32_32x32x16_bf16 {acc}, {vr(AF+(u*2+nt)*4,4)}, {vr(BF+stg*16+(u*2+st)*4,4)}, {acc}")
    A("""s_nop 15
    s_nop 3""")
    stamp(A, 2, 2)
    A("""v_lshlrev_b32 v6, 4, v1
    v_add_u32 v6, s15, v6""")
    for tl in range(4):
        for q in range(4):
            A(f"ds_write_b128 v6, {vr(ACC+tl*16+q*4,4)} offset:{tl*4096+q*1024}")
    A("""s_waitcnt lgkmcnt(0)
    s_barrier
    s_lshl_b32 s13, s3, 12
    v_lshlrev_b32 v6, 4, v1
    v_add_u32 v6, s13, v6""")
    for w in range(4):
        for q in range(4):
            A(f"ds_read_b128 {vr(ACC+w*16+q*4,4)}, v6 offset:{w*16384+q*1024}")
    A("""v_lshlrev_b32 v8, 10, v7
    v_lshrrev_b32 v10, 5, v1
    v_lshl_add_u32 v8, v10, 5, v8
    s_lshl_b32 s14, s5, 7
    s_lshl_b32 s15, s9, 6
    s_add_u32 s14, s14, s15
    s_waitcnt vmcnt(0) lgkmcnt(0)
    v_sub_f32 v10, 1.0, v9
    v_cvt_pk_bf16_f32 v11, v10, v10
    v_lshlrev_b32 v10, 16, v11""")
    for i in range(8):
        a0, a1 = ACC + 2 * i, ACC + 2 * i + 1
        b0, b1 = PB + 16 + 2 * i, PB + 16 + 2 * i + 1
        A(f"""v_add_f32 v{a0}, v{a0}, v{a0+16}
        v_add_f32 v{a1}, v{a1}, v{a1+16}
        v_add_f32 v{a0+32}, v{a0+32}, v{a0+48}
        v_add_f32 v{a1+32}, v{a1+32}, v{a1+48}
        v_add_f32 v{a0}, v{a0}, v{a0+32}
        v_add_f32 v{a1}, v{a1}, v{a1+32}
        v_lshlrev_b32 v{b0}, 16, v{PB+i}
        v_and_b32 v{b1}, 0xffff0000, v{PB+i}""")
        bf16_round_pair(A, a0, a1, T + 16)
        A(f"""v_mul_f32 v{a0}, v{a0}, v9
        v_mul_f32 v{a1}, v{a1}, v9
        v_mul_f32 v{b0}, v{b0}, v10
        v_mul_f32 v{b1}, v{b1}, v10""")
        bf16_round_pair(A, a0, a1, T + 16)
        bf16_round_pair(A, b0, b1, T + 17)
        A(f"""v_add_f32 v{a0}, v{a0}, v{b0}
        v_add_f32 v{a1}, v{a1}, v{b1}
        v_cvt_pk_bf16_f32 v{T+i}, v{a0}, v{a1}""")
    stamp(A, 2, 3)
    A(f"""buffer_store_dwordx4 {vr(T,4)}, v8, s[48:51], s14 offen
    buffer_store_dwordx4 {vr(T+4,4)}, v8, s[48:51], s14 offen offset:16
    K3_END:
    s_endpgm""")


HEADER = """; Kernarg layout for this problem (88 bytes, ptrs only, base s[0:1]):
; @launch kernel=k1_kernel grid=(256,1,1) block=(512,1,1) lds=135168
; @launch kernel=k2_kernel grid=(256,1,1) block=(640,1,1) lds=163840
.amdgcn_target "amdgcn-amd-amdhsa--gfx950"
.text
"""


def kd(name, vgpr, sgpr=102):
    acc = (vgpr + 3) // 4 * 4
    return f""".amdhsa_kernel {name}
  .amdhsa_next_free_vgpr {vgpr}
  .amdhsa_next_free_sgpr {sgpr}
  .amdhsa_accum_offset {acc}
  .amdhsa_group_segment_fixed_size 0
  .amdhsa_kernarg_size 88
  .amdhsa_user_sgpr_count 2
  .amdhsa_user_sgpr_kernarg_segment_ptr 1
  .amdhsa_system_sgpr_workgroup_id_x 1
.end_amdhsa_kernel
"""


def main():
    out = HEADER
    for nm, fn in (("k1_kernel", gen_k1), ("k2_kernel", gen_k2)):
        A = Asm()
        A.lab = {"k1_kernel": 1000, "k2_kernel": 2000, "k3_kernel": 3000}[nm]
        fn(A)
        out += f".globl {nm}\n.p2align 8\n.type {nm},@function\n" + A.text()
    out += '.section .rodata,"a"\n'
    for nm, v in (("k1_kernel", 192), ("k2_kernel", 168)):
        if "stamp" in FL:
            v = 256 if nm != "k2_kernel" else 168
        out += ".p2align 6\n" + kd(nm, v)
    path = sys.argv[1] if len(sys.argv) > 1 else f"cdna_kernels/{NAME}.s"
    open(path, "w").write(out)


if __name__ == "__main__":
    main()
```

```python
import sys, struct, os
FL = set(os.environ.get("FL", "").split(","))
STFLAG = os.environ.get("STFLAG", "")

NAME = "gated_mix__mha_block__dense_activation_mish__prompt"

WS_QB = 0x000000
WS_QH = 0x200000
WS_QL = 0x400000
WS_KB = 0x600000
WS_VT = 0x800000
WS_ACT = 0xA00000
WS_OB = 0x1000000
WS_G = 0x1200000
WS_KN = 0x1210000
WS_PART = 0x1400000
WS_SIZE = 0x2800000

LOG2E = 1.4426950408889634


def f2u(x):
    return struct.unpack("<I", struct.pack("<f", x))[0]


class Asm:
    def __init__(self):
        self.lines = []
        self.lab = 0

    def __call__(self, s):
        for l in s.strip("\n").split("\n"):
            l = l.strip()
            if l:
                if "offset:" in l:
                    off = int(l.split("offset:")[1].split()[0], 0)
                    assert off < (4096 if l.startswith("buffer") else 65536), l
                if l.startswith("buffer_store") and STFLAG:
                    l = l + " " + STFLAG
                self.lines.append("    " + l if not l.endswith(":") else l)

    def label(self, p="L"):
        self.lab += 1
        return f"{p}_{self.lab}"

    def text(self):
        return "\n".join(self.lines) + "\n"


def vr(a, n):
    return f"v[{a}:{a+n-1}]"


def srd(A, d, lo, hi, size):
    A(f"""s_mov_b32 s{d}, s{lo}
    s_and_b32 s{d+1}, s{hi}, 0xffff
    s_mov_b32 s{d+2}, {size}
    s_mov_b32 s{d+3}, 0x20000""")


STAMP_BASE = 0x2400000


def stamp(A, kern, idx):
    if "stamp" not in FL:
        return
    r = 166 if kern == 1 else 254
    A(f"""s_memtime s[92:93]
    s_lshl_b32 s94, s2, 4
    s_add_u32 s94, s94, s3
    s_lshl_b32 s94, s94, 6
    s_add_u32 s94, s94, {STAMP_BASE + kern*0x40000 + idx*4}
    s_waitcnt lgkmcnt(0)
    v_mov_b32 v{r+1}, s92
    v_mov_b32 v{r}, 0
    buffer_store_dword v{r+1}, v{r}, s[44:47], s94 offen
    s_memrealtime s[92:93]
    s_waitcnt lgkmcnt(0)
    v_mov_b32 v{r+1}, s92
    s_add_u32 s94, s94, 0x100000
    buffer_store_dword v{r+1}, v{r}, s[44:47], s94 offen""")


def bf16_round_pair(A, a, b, tmp):
    A(f"""v_cvt_pk_bf16_f32 v{tmp}, v{a}, v{b}
    v_lshlrev_b32 v{a}, 16, v{tmp}
    v_and_b32 v{b}, 0xffff0000, v{tmp}""")


def gen_k1(A):
    BUF = 45056
    A("k1_kernel:")
    A("""s_cmp_ge_u32 s2, 256
    s_cbranch_scc1 K1_END
    s_load_dwordx16 s[16:31], s[0:1], 0
    s_load_dwordx2 s[32:33], s[0:1], 80
    v_lshrrev_b32 v2, 6, v0
    v_and_b32 v1, 63, v0
    s_nop 0
    v_readfirstlane_b32 s3, v2
    s_lshr_b32 s4, s2, 3
    s_and_b32 s5, s2, 7
    s_waitcnt lgkmcnt(0)""")
    srd(A, 36, 16, 17, 2048 * 512 * 2)
    srd(A, 44, 32, 33, WS_SIZE)
    stamp(A, 0, 0)
    A("""s_cmp_ge_u32 s2, 248
    s_cbranch_scc1 %s""" % ("K1_END" if "nogate" in FL else "K1_GATE"))
    srd(A, 48, 26, 27, 1376 * 2)
    A("""s_mov_b32 s42, %d
    s_mov_b32 s6, 2752
    s_cmp_lt_u32 s4, 16
    s_cselect_b32 s40, s18, s24
    s_cselect_b32 s41, s19, s25
    s_cselect_b32 s42, %d, s42
    s_mov_b32 s43, 0x20000
    s_cselect_b32 s6, 3072, s6
    s_cselect_b32 s8, 0, 16
    s_and_b32 s41, s41, 0xffff
    s_sub_u32 s8, s4, s8
    s_mul_i32 s7, s8, 96
    s_mul_i32 s9, s8, 3""" % (512 * 1376 * 2, 512 * 1536 * 2))
    A("""v_and_b32 v2, 31, v1
    v_lshrrev_b32 v3, 5, v1""")
    A("""v_lshrrev_b32 v4, 3, v1
    v_lshlrev_b32 v4, 10, v4
    v_and_b32 v5, 7, v1
    v_lshrrev_b32 v6, 4, v1
    v_xor_b32 v7, v5, v6
    v_lshl_add_u32 v10, v7, 4, v4
    v_add_u32 v6, 4, v6
    v_xor_b32 v7, v5, v6
    v_lshl_add_u32 v11, v7, 4, v4""")
    A("""s_add_u32 s10, s3, 8
    s_cmp_lt_u32 s3, 4
    s_cselect_b32 s10, s10, s3
    s_lshl_b32 s11, s7, 1
    s_mov_b32 s12, 0x15555556
    s_lshl_b32 s13, s3, 6
    s_lshl_b32 s14, s10, 6""")
    for qq in range(2):
        A(f"""v_add_u32 v4, s{13+qq}, v1
        v_mul_hi_u32 v5, v4, s12
        v_mul_u32_u24 v6, 12, v5
        v_sub_u32 v6, v4, v6
        v_mul_lo_u32 v5, v5, s6
        v_lshl_add_u32 v5, v6, 4, v5
        v_add_u32 v{12+qq}, s11, v5""")
    A("""s_lshl_b32 s58, s5, 18
    s_lshl_b32 s59, s3, 15
    s_add_u32 s58, s58, s59
    s_lshl_b32 s60, s3, 12
    s_lshl_b32 s61, s3, 10
    s_add_u32 s61, s61, 32768
    s_lshl_b32 s57, s10, 10
    s_add_u32 s57, s57, 32768
    s_lshl_b32 s62, s6, 6""")

    def dma_piece(c, b, i):
        if i < 4:
            A(f"""s_add_u32 m0, s60, {b*BUF + i*1024}
            s_add_u32 s63, s58, {i*8192 + c*128}
            buffer_load_dwordx4 v{10 + (i&1)}, s[36:39], s63 offen lds""")
        else:
            qq = i - 4
            A(f"""s_mul_i32 s63, s62, {c}
            s_add_u32 m0, s{61 if qq == 0 else 57}, {b*BUF}
            s_nop 0
            buffer_load_dwordx4 v{12+qq}, s[40:43], s63 offen lds""")

    def dma(c, b):
        for i in range(6):
            dma_piece(c, b, i)

    dma(0, 0)
    A("""s_cmp_lt_u32 s4, 16
    s_cbranch_scc1 K1_NOB1
    v_lshlrev_b32 v4, 3, v3
    v_add_u32 v4, s11, v4""")
    for t in range(3):
        for q in range(4):
            A(f"buffer_load_dwordx2 v[{32+t*8+q*2}:{32+t*8+q*2+1}], v4, s[48:51], 0 offen offset:{t*64+q*16}")
    A("K1_NOB1:")
    dma(1, 1)
    A("""v_lshrrev_b32 v4, 1, v2
    v_and_b32 v4, 7, v4
    v_lshlrev_b32 v5, 7, v2
    v_add_u32 v5, s60, v5""")
    for u in range(4):
        A(f"""v_add_u32 v6, {2*u}, v3
        v_xor_b32 v6, v6, v4
        v_lshl_add_u32 v{16+u}, v6, 4, v5""")
    for b in (1, 2):
        for u in range(4):
            A(f"v_add_u32 v{16+4*b+u}, {b*BUF}, v{16+u}")
    A("""v_bfe_u32 v4, v1, 2, 2
    v_lshl_add_u32 v4, v3, 3, v4
    v_mul_u32_u24 v4, 192, v4
    v_bfe_u32 v5, v1, 4, 1
    v_lshl_add_u32 v4, v5, 5, v4
    v_and_b32 v5, 3, v1
    v_lshl_add_u32 v4, v5, 3, v4""")
    for b in range(3):
        A(f"v_add_u32 v{28+b}, {32768 + b*BUF}, v4")

    XF = 56
    WF = 64
    ACC = 88
    T = 136
    stamp(A, 0, 12)
    A("""s_cmp_ge_u32 s4, 16
    s_cbranch_scc1 K1_INITB""")
    for i in range(48):
        A(f"v_mov_b32 v{ACC+i}, 0")
    A("""s_branch K1_INITD
    K1_INITB:
    s_waitcnt vmcnt(6)""")
    for t in range(3):
        for i in range(8):
            bq = 32 + t * 8 + (i >> 1) * 2 + (i & 1)
            A(f"""v_lshlrev_b32 v{ACC+t*16+2*i}, 16, v{bq}
            v_and_b32 v{ACC+t*16+2*i+1}, 0xffff0000, v{bq}""")
    A("K1_INITD:")

    def reads(b, u, st):
        A(f"ds_read_b128 {vr(XF+st*4,4)}, v{16+4*b+u}")
        for t in range(3):
            for rd in range(2):
                A(f"ds_read_b64_tr_b16 {vr(WF+st*12+t*4+rd*2,2)}, v{28+b} offset:{(16*u+4*rd)*192+64*t}")

    def mainloop(variant):
        for c in range(8):
            b = c % 3
            if c < 7:
                A("s_waitcnt vmcnt(6)")
            else:
                A("s_waitcnt vmcnt(0)")
            A("s_barrier")
            stamp(A, 0, 1 + c)
            reads(b, 0, 0)
            for u in range(4):
                st = u & 1
                if u < 3:
                    reads(b, u + 1, st ^ 1)
                    A("s_waitcnt lgkmcnt(7)")
                else:
                    A("s_waitcnt lgkmcnt(0)")
                for t in range(3):
                    acc = vr(ACC + t * 16, 16)
                    xf = vr(XF + st * 4, 4)
                    wf = vr(WF + st * 12 + t * 4, 4)
                    if variant[t] == "T":
                        A(f"v_mfma_f32_32x32x16_bf16 {acc}, {wf}, {xf}, {acc}")
                    else:
                        A(f"v_mfma_f32_32x32x16_bf16 {acc}, {xf}, {wf}, {acc}")
                    if c + 2 < 8 and t < 2 and u < 3:
                        dma_piece(c + 2, (c + 2) % 3, u * 2 + t)
        A("s_nop 15")
        A("s_nop 3")

    stamp(A, 0, 13)
    A("""s_cmp_eq_u32 s4, 10
    s_cbranch_scc1 K1_TTN
    s_cmp_lt_u32 s4, 11
    s_cbranch_scc1 K1_TTT
    s_cmp_lt_u32 s4, 16
    s_cbranch_scc1 K1_NNN
    K1_TTT:""")
    mainloop("TTT")
    A("s_branch K1_EPI")
    A("K1_TTN:")
    mainloop("TTN")
    A("s_branch K1_EPI")
    A("K1_NNN:")
    mainloop("NNN")
    A("K1_EPI:")
    stamp(A, 0, 9)

    A(f"""v_lshlrev_b32 v4, 4, v1
    v_bfe_u32 v5, v1, 4, 1
    v_lshlrev_b32 v5, 16, v5
    v_lshl_add_u32 v5, v3, 8, v5
    v_and_b32 v6, 15, v1
    v_lshl_add_u32 v5, v6, 4, v5""")
    A("""s_lshl_b32 s64, s5, 3
    s_add_u32 s64, s64, s3
    s_lshl_b32 s65, s64, 10""")
    CQ = f2u(0.25 * LOG2E)
    for t in range(3):
        lq, lk, lv, lf, ln = (A.label("K1E") for _ in range(5))
        a = ACC + t * 16
        A(f"""s_add_u32 s66, s9, {t}
        s_cmp_ge_u32 s4, 16
        s_cbranch_scc1 {lf}
        s_and_b32 s67, s66, 15
        s_lshl_b32 s67, s67, 17
        s_add_u32 s68, s65, s67
        s_cmp_lt_u32 s66, 16
        s_cbranch_scc1 {lq}
        s_cmp_lt_u32 s66, 32
        s_cbranch_scc1 {lk}
        {lv}:""")
        for i in range(8):
            A(f"v_cvt_pk_bf16_f32 v{T+i}, v{a+2*i}, v{a+2*i+1}")
        A(f"""s_add_u32 s68, s68, {WS_VT}
        buffer_store_dwordx4 {vr(T,4)}, v5, s[44:47], s68 offen
        buffer_store_dwordx4 {vr(T+4,4)}, v5, s[44:47], s68 offen offset:512
        s_nop 1
        s_branch {ln}""")
        A(f"{lk}:")
        for i in range(8):
            A(f"v_cvt_pk_bf16_f32 v{T+i}, v{a+2*i}, v{a+2*i+1}")
        A(f"""s_lshl_b32 s71, s64, 2
        s_add_u32 s68, s68, {WS_KB}
        s_add_u32 s69, s68, 65536
        buffer_store_dwordx4 {vr(T,4)}, v4, s[44:47], s68 offen
        buffer_store_dwordx4 {vr(T+4,4)}, v4, s[44:47], s69 offen""")
        for hd in range(2):
            n = T + 8 + hd
            for i in range(4):
                A(f"""v_lshlrev_b32 v{T+12}, 16, v{T+hd*4+i}
                v_and_b32 v{T+13}, 0xffff0000, v{T+hd*4+i}""")
                if i == 0:
                    A(f"v_mul_f32 v{n}, v{T+12}, v{T+12}")
                else:
                    A(f"v_fmac_f32 v{n}, v{T+12}, v{T+12}")
                A(f"v_fmac_f32 v{n}, v{T+13}, v{T+13}")
        for hd in range(2):
            n = T + 8 + hd
            A(f"""v_mov_b32 v{T+12}, v{n}
            s_nop 1
            v_permlane32_swap_b32 v{n}, v{T+12}
            s_nop 1
            v_add_f32 v{n}, v{n}, v{T+12}
            s_nop 1
            v_max_f32_dpp v{n}, v{n}, v{n} quad_perm:[1,0,3,2] row_mask:0xf bank_mask:0xf
            s_nop 1
            v_max_f32_dpp v{n}, v{n}, v{n} quad_perm:[2,3,0,1] row_mask:0xf bank_mask:0xf
            s_nop 1
            v_max_f32_dpp v{n}, v{n}, v{n} row_half_mirror row_mask:0xf bank_mask:0xf
            s_nop 1
            v_max_f32_dpp v{n}, v{n}, v{n} row_mirror row_mask:0xf bank_mask:0xf
            s_nop 1
            v_mov_b32 v{T+12}, v{n}
            s_nop 1
            v_permlane16_swap_b32 v{n}, v{T+12}
            s_nop 1
            v_max_f32 v{n}, v{n}, v{T+12}""")
        A(f"""s_lshr_b32 s69, s67, 8
        s_add_u32 s71, s71, s69
        s_add_u32 s71, s71, {WS_KN}
        v_mov_b32 v{T+12}, 0
        buffer_store_dword v{T+8}, v{T+12}, s[44:47], s71 offen
        buffer_store_dword v{T+9}, v{T+12}, s[44:47], s71 offen offset:256
        s_nop 1
        s_branch {ln}""")
        A(f"{lq}:")
        A(f"s_mov_b32 s70, 0x{CQ:08x}")
        for i in range(8):
            x0, x1 = a + 2 * i, a + 2 * i + 1
            A(f"""v_cvt_pk_bf16_f32 v{T+i}, v{x0}, v{x1}
            v_lshlrev_b32 v{x0}, 16, v{T+i}
            v_and_b32 v{x1}, 0xffff0000, v{T+i}
            v_mul_f32 v{x0}, s70, v{x0}
            v_mul_f32 v{x1}, s70, v{x1}
            v_cvt_pk_bf16_f32 v{T+i}, v{x0}, v{x1}""")
        A(f"""s_add_u32 s69, s68, 65536
        buffer_store_dwordx4 {vr(T,4)}, v4, s[44:47], s68 offen
        buffer_store_dwordx4 {vr(T+4,4)}, v4, s[44:47], s69 offen
        s_nop 1
        s_branch {ln}""")
        A(f"""{lf}:
        s_cmp_ge_u32 s66, 43
        s_cbranch_scc1 {ln}
        s_mov_b32 s70, 0x{f2u(LOG2E):08x}
        s_mov_b32 s71, 0x41a00000""")
        for i in range(8):
            x0, x1 = a + 2 * i, a + 2 * i + 1
            p = T + 24
            bf16_round_pair(A, x0, x1, p)
            A(f"""v_min_f32 v{p+1}, s71, v{x0}
            v_min_f32 v{p+2}, s71, v{x1}
            v_mul_f32 v{p+1}, s70, v{p+1}
            v_mul_f32 v{p+2}, s70, v{p+2}
            v_exp_f32 v{p+1}, v{p+1}
            v_exp_f32 v{p+2}, v{p+2}
            s_nop 0
            v_add_f32 v{p+3}, 2.0, v{p+1}
            v_add_f32 v{p+4}, 2.0, v{p+2}
            v_mul_f32 v{p+1}, v{p+1}, v{p+3}
            v_mul_f32 v{p+2}, v{p+2}, v{p+4}
            v_add_f32 v{p+3}, 2.0, v{p+1}
            v_add_f32 v{p+4}, 2.0, v{p+2}
            v_rcp_f32 v{p+3}, v{p+3}
            v_rcp_f32 v{p+4}, v{p+4}
            v_mul_f32 v{x0}, v{x0}, v{p+1}
            v_mul_f32 v{x1}, v{x1}, v{p+2}
            v_mul_f32 v{x0}, v{x0}, v{p+3}
            v_mul_f32 v{x1}, v{x1}, v{p+4}
            v_cvt_pk_bf16_f32 v{T+i}, v{x0}, v{x1}""")
        A(f"""s_mul_i32 s68, s64, 43
        s_add_u32 s68, s68, s66
        s_lshl_b32 s68, s68, 11
        s_add_u32 s68, s68, {WS_ACT}
        buffer_store_dwordx4 {vr(T,4)}, v4, s[44:47], s68 offen
        buffer_store_dwordx4 {vr(T+4,4)}, v4, s[44:47], s68 offen offset:1024
        s_nop 1""")
        A(f"{ln}:")
    stamp(A, 0, 10)
    if "stamp" in FL:
        A("s_waitcnt vmcnt(0)")
    stamp(A, 0, 11)
    A("s_branch K1_END")

    A("K1_GATE:")
    srd(A, 48, 30, 31, 1024)
    A("""v_and_b32 v2, 7, v1
    v_lshrrev_b32 v3, 3, v1
    v_lshlrev_b32 v4, 7, v2""")
    for q in range(8):
        A(f"buffer_load_dwordx4 {vr(32+4*q,4)}, v4, s[48:51], 0 offen offset:{q*16}")
    A("""v_lshl_add_u32 v5, v3, 10, v4
    s_lshl_b32 s58, s5, 18
    s_lshl_b32 s59, s3, 15
    s_add_u32 s58, s58, s59""")
    for it in range(2):
        A(f"s_add_u32 s59, s58, {it*8192}")
        for q in range(8):
            A(f"buffer_load_dwordx4 {vr(128+it*32+4*q,4)}, v5, s[36:39], s59 offen offset:{q*16}")
    A("s_waitcnt vmcnt(16)")
    for d in range(32):
        A(f"""v_lshlrev_b32 v{64+2*d}, 16, v{32+d}
        v_and_b32 v{65+2*d}, 0xffff0000, v{32+d}""")
    A(f"""s_lshl_b32 s60, s5, 10
    s_lshl_b32 s61, s3, 7
    s_add_u32 s60, s60, s61
    s_add_u32 s60, s60, {WS_G}
    v_lshlrev_b32 v6, 2, v3
    s_mov_b32 s70, 0x{f2u(-LOG2E):08x}""")
    for it in range(4):
        xb = 128 + (it & 1) * 32
        A("""v_mov_b32 v8, 0
        v_mov_b32 v9, 0""")
        A("s_waitcnt vmcnt(8)" if it < 3 else "s_waitcnt vmcnt(0)")
        if it >= 1:
            pass
        for d in range(32):
            A(f"""v_lshlrev_b32 v10, 16, v{xb+d}
            v_and_b32 v11, 0xffff0000, v{xb+d}
            v_mul_f32 v10, v10, v{64+2*d}
            v_mul_f32 v11, v11, v{65+2*d}
            v_cvt_pk_bf16_f32 v12, v10, v11
            v_lshlrev_b32 v10, 16, v12
            v_and_b32 v11, 0xffff0000, v12
            v_add_f32 v8, v8, v10
            v_add_f32 v9, v9, v11""")
        if it + 2 < 4:
            A(f"s_add_u32 s59, s58, {(it+2)*8192}")
            for q in range(8):
                A(f"buffer_load_dwordx4 {vr(xb+4*q,4)}, v5, s[36:39], s59 offen offset:{q*16}")
        A(f"""v_add_f32 v8, v8, v9
        s_nop 1
        v_add_f32_dpp v8, v8, v8 quad_perm:[1,0,3,2] row_mask:0xf bank_mask:0xf
        s_nop 1
        v_add_f32_dpp v8, v8, v8 quad_perm:[2,3,0,1] row_mask:0xf bank_mask:0xf
        s_nop 1
        v_add_f32_dpp v8, v8, v8 row_half_mirror row_mask:0xf bank_mask:0xf
        s_nop 1
        v_cvt_pk_bf16_f32 v9, v8, v8
        v_lshlrev_b32 v8, 16, v9
        v_mul_f32 v8, s70, v8
        v_exp_f32 v8, v8
        s_nop 0
        v_add_f32 v8, 1.0, v8
        v_rcp_f32 v8, v8
        s_nop 0
        v_cvt_pk_bf16_f32 v9, v8, v8
        v_lshlrev_b32 v13, 16, v9
        buffer_store_dword v13, v6, s[44:47], s60 offen offset:{it*32}""")
    A("""K1_END:
    s_endpgm""")


def gen_k2(A):
    QB = 8
    KF = 20
    VF = 36
    P = 52
    NEGM = 68
    SA, SB = 84, 100
    O = 116
    M0, M1 = 132, 133
    A("k2_kernel:")
    A("""s_cmp_ge_u32 s2, 256
    s_cbranch_scc1 K2_END
    s_load_dwordx2 s[32:33], s[0:1], 80
    s_load_dwordx2 s[28:29], s[0:1], 48
    s_load_dwordx2 s[34:35], s[0:1], 16
    s_load_dwordx4 s[36:39], s[0:1], 64
    v_lshrrev_b32 v2, 6, v0
    v_and_b32 v1, 63, v0
    s_nop 0
    v_readfirstlane_b32 s3, v2
    s_and_b32 s4, s2, 7
    s_lshl_b32 s4, s4, 2
    s_bfe_u32 s5, s2, 0x20003
    s_add_u32 s4, s4, s5
    s_lshr_b32 s5, s2, 5
    s_waitcnt lgkmcnt(0)""")
    srd(A, 44, 32, 33, WS_SIZE)
    stamp(A, 1, 0)
    A("""v_lshlrev_b32 v2, 4, v1
    v_mov_b32 v3, 0x23000
    v_mov_b32 v4, 0
    v_mov_b32 v5, 0
    ds_write_b64 v3, v[4:5]
    ds_write_b64 v3, v[4:5] offset:8
    ds_write_b64 v3, v[4:5] offset:16
    s_lshl_b32 s26, s5, 2
    s_lshr_b32 s27, s4, 3
    s_add_u32 s26, s26, s27
    s_and_b32 s27, s4, 7
    s_waitcnt lgkmcnt(0)
    s_barrier
    s_cmp_ge_u32 s3, 8
    s_cbranch_scc1 K2_FFN""")
    A(f"""s_lshl_b32 s6, s4, 16
    s_lshl_b32 s7, s3, 13
    s_add_u32 s8, s6, s7
    s_add_u32 s9, s8, {WS_KB}
    s_add_u32 s10, s8, {WS_VT}""")
    A(f"""s_lshl_b32 s12, s5, 3
    s_add_u32 s12, s12, s3
    s_lshl_b32 s13, s12, 10
    s_add_u32 s13, s13, s6
    buffer_load_dwordx4 {vr(QB,4)}, v2, s[44:47], s13 offen
    s_lshl_b32 s14, s4, 8
    s_add_u32 s14, s14, {WS_KN}
    v_lshlrev_b32 v3, 2, v1
    buffer_load_dword v12, v3, s[44:47], s14 offen""")
    A(f"""s_lshl_b32 s7, s3, 11
    s_add_u32 s9, s6, s7
    s_add_u32 s10, s9, {WS_VT}
    s_add_u32 s9, s9, {WS_KB}""")
    for q in range(2):
        A(f"""s_add_u32 m0, s7, {q*1024}
        s_add_u32 s11, s9, {q*1024}
        buffer_load_dwordx4 v2, s[44:47], s11 offen lds
        s_add_u32 m0, s7, {65536+q*1024}
        s_add_u32 s11, s10, {q*1024}
        buffer_load_dwordx4 v2, s[44:47], s11 offen lds""")
    A(f"""s_mul_i32 s7, s3, 6144
    s_add_u32 s7, s7, 16384
    s_add_u32 s9, s6, s7
    s_add_u32 s10, s9, {WS_VT}
    s_add_u32 s9, s9, {WS_KB}""")
    for q in range(6):
        A(f"""s_add_u32 m0, s7, {q*1024}
        s_add_u32 s11, s9, {q*1024}
        buffer_load_dwordx4 v2, s[44:47], s11 offen lds
        s_add_u32 m0, s7, {65536+q*1024}
        s_add_u32 s11, s10, {q*1024}
        buffer_load_dwordx4 v2, s[44:47], s11 offen lds""")

    def sync8(idx, vm):
        l = A.label("SY")
        A(f"""s_waitcnt vmcnt({vm})
        v_mov_b32 v134, 0x23000
        v_mov_b32 v135, 1
        s_mov_b64 exec, 1
        ds_add_u32 v134, v135 offset:{idx*4}
        s_mov_b64 exec, -1
        {l}:
        ds_read_b32 v135, v134 offset:{idx*4}
        s_waitcnt lgkmcnt(0)
        v_readfirstlane_b32 s21, v135
        s_cmp_lt_u32 s21, 8
        s_cbranch_scc1 {l}""")
    A("""v_and_b32 v3, 31, v1
    v_lshrrev_b32 v4, 5, v1
    v_and_b32 v5, 15, v1
    v_lshlrev_b32 v5, 4, v5
    v_lshl_add_u32 v5, v4, 8, v5
    v_add_u32 v13, 0x10000, v5
    v_and_b32 v4, 0x1b, v3
    v_mov_b32 v5, 0x3f803f80
    v_cmp_eq_u32 vcc, 16, v4
    s_nop 1
    v_cndmask_b32 v5, 0, v5, vcc
    s_mov_b32 s30, 0x0000ffff
    s_mov_b32 s31, 0x0000ffff
    s_mov_b32 s23, 0
    s_mov_b32 s25, 0x07060302""")
    for r in range(16):
        A(f"v_mov_b32 v{VF+r}, v5")
    A("s_waitcnt vmcnt(16)")
    for i in range(4):
        A(f"""v_lshlrev_b32 v14, 16, v{QB+i}
        v_and_b32 v15, 0xffff0000, v{QB+i}""")
        A("v_mul_f32 v16, v14, v14" if i == 0 else "v_fmac_f32 v16, v14, v14")
        A("v_fmac_f32 v16, v15, v15")
    A("""v_mov_b32 v14, v16
    s_nop 1
    v_permlane32_swap_b32 v16, v14
    s_nop 1
    v_add_f32 v16, v16, v14
    v_max_f32_dpp v12, v12, v12 quad_perm:[1,0,3,2] row_mask:0xf bank_mask:0xf
    s_nop 1
    v_max_f32_dpp v12, v12, v12 quad_perm:[2,3,0,1] row_mask:0xf bank_mask:0xf
    s_nop 1
    v_max_f32_dpp v12, v12, v12 row_half_mirror row_mask:0xf bank_mask:0xf
    s_nop 1
    v_max_f32_dpp v12, v12, v12 row_mirror row_mask:0xf bank_mask:0xf
    s_nop 1
    v_mov_b32 v14, v12
    s_nop 1
    v_permlane16_swap_b32 v12, v14
    s_nop 1
    v_max_f32 v12, v12, v14
    s_nop 1
    v_mov_b32 v14, v12
    s_nop 1
    v_permlane32_swap_b32 v12, v14
    s_nop 1
    v_max_f32 v12, v12, v14
    v_mul_f32 v16, v16, v12
    v_sqrt_f32 v16, v16
    s_nop 0""")
    A(f"v_mul_f32 v{M0}, 0x{f2u(-(1.0+2.0**-7)):08x}, v16")
    sync8(0, 12)
    stamp(A, 1, 1)
    S = [SA, SB]
    A("K2_P2START:")
    for r in range(16):
        A(f"v_mov_b32 v{NEGM+r}, v{M0}")
        A(f"v_mov_b32 v{P+r}, 0")
        A(f"v_mov_b32 v{O+r}, 0")
    A(f"""v_mov_b32 v6, v2
    v_mov_b32 v7, v13
    ds_read_b128 {vr(KF,4)}, v6
    ds_read_b128 {vr(KF+4,4)}, v6 offset:1024
    s_waitcnt lgkmcnt(1)
    v_mfma_f32_32x32x16_bf16 {vr(SA,16)}, {vr(KF,4)}, {vr(QB,4)}, {vr(NEGM,16)}
    s_nop 7
    s_nop 3
    s_mov_b32 s20, 0
    K2_P2:
    s_cmp_eq_u32 s20, 3
    s_cbranch_scc0 K2_NOSYNC
    s_cmp_eq_u32 s23, 0
    s_cbranch_scc0 K2_NOSYNC""")
    sync8(1, 0)
    A("K2_NOSYNC:")
    for t in range(4):
        X, Y = S[t & 1], S[(t + 1) & 1]
        vcur, vprv = VF + (t & 1) * 8, VF + ((t + 1) & 1) * 8
        pcur, pprv = P + (t & 1) * 8, P + ((t + 1) & 1) * 8
        kn = KF + ((t + 1) % 4) * 4
        A(f"""ds_read_b128 {vr(KF+((t+2)%4)*4,4)}, v6 offset:{(t+2)*1024}
        s_mov_b64 exec, s[30:31]
        ds_read_b128 {vr(vcur,4)}, v7 offset:{t*1024}
        ds_read_b128 {vr(vcur+4,4)}, v7 offset:{t*1024+512}
        s_mov_b64 exec, -1
        s_waitcnt lgkmcnt(3)""")
        def mf(x):
            if "nomfma" not in FL:
                A(x)
        def ex(r):
            if "noexp" in FL:
                A(f"v_mov_b32 v{X+r}, v{X+r}")
            elif "sepexp" in FL:
                A(f"v_exp_f32 v{140+r}, v{X+r}")
            elif "noexp2" not in FL:
                A(f"v_exp_f32 v{X+r}, v{X+r}")
        mf(f"v_mfma_f32_32x32x16_bf16 {vr(Y,16)}, {vr(kn,4)}, {vr(QB,4)}, {vr(NEGM,16)}")
        for r in range(0, 5):
            ex(r)
        mf(f"v_mfma_f32_32x32x16_bf16 {vr(O,16)}, {vr(vprv,4)}, {vr(pprv,4)}, {vr(O,16)}")
        for r in range(5, 10):
            ex(r)
        mf(f"v_mfma_f32_32x32x16_bf16 {vr(O,16)}, {vr(vprv+4,4)}, {vr(pprv+4,4)}, {vr(O,16)}")
        for r in range(10, 16):
            ex(r)
        if "nocvt" not in FL:
            for i in range(8):
                if "perm" in FL:
                    A(f"v_perm_b32 v{pcur+i}, v{X+2*i+1}, v{X+2*i}, s25")
                elif "sepexp" in FL:
                    A(f"v_cvt_pk_bf16_f32 v{pcur+i}, v{140+2*i}, v{140+2*i+1}")
                else:
                    A(f"v_cvt_pk_bf16_f32 v{pcur+i}, v{X+2*i}, v{X+2*i+1}")
    A("""v_add_u32 v6, 0x1000, v6
    v_add_u32 v7, 0x1000, v7
    s_add_u32 s20, s20, 1
    s_cmp_lt_u32 s20, 16
    s_cbranch_scc1 K2_P2""")
    A(f"""s_waitcnt lgkmcnt(0)
    s_nop 1
    v_mfma_f32_32x32x16_bf16 {vr(O,16)}, {vr(VF+8,4)}, {vr(P+8,4)}, {vr(O,16)}
    v_mfma_f32_32x32x16_bf16 {vr(O,16)}, {vr(VF+12,4)}, {vr(P+12,4)}, {vr(O,16)}
    s_nop 15
    s_nop 3""")
    A(f"""s_mov_b32 s24, 0x27000000
    v_cmp_nle_f32 vcc, s24, v{O+8}
    s_cmp_eq_u32 s23, 0
    s_cbranch_scc0 K2_FIN
    s_cbranch_vccz K2_FIN
    s_mov_b32 s23, 1""" if "forcefb" not in FL and "nofb" not in FL else "s_branch K2_FIN" if "nofb" in FL else f"""s_cmp_eq_u32 s23, 0
    s_cbranch_scc0 K2_FIN
    s_mov_b32 s23, 1""")
    A(f"""v_mov_b32 v{M0}, 0xff800000
    v_mov_b32 v{M1}, 0xff800000
    v_mov_b32 v6, v2
    ds_read_b128 {vr(KF,4)}, v6
    ds_read_b128 {vr(KF+4,4)}, v6 offset:1024
    s_waitcnt lgkmcnt(1)
    v_mfma_f32_32x32x16_bf16 {vr(SA,16)}, {vr(KF,4)}, {vr(QB,4)}, 0
    s_nop 7
    s_mov_b32 s20, 0
    K2_P1:""")
    for t in range(4):
        X, Y = S[t & 1], S[(t + 1) & 1]
        A(f"""ds_read_b128 {vr(KF+((t+2)%4)*4,4)}, v6 offset:{(t+2)*1024}
        s_waitcnt lgkmcnt(1)
        v_mfma_f32_32x32x16_bf16 {vr(Y,16)}, {vr(KF+((t+1)%4)*4,4)}, {vr(QB,4)}, 0
        s_nop 1""")
        for i in range(4):
            A(f"""v_max3_f32 v{M0}, v{M0}, v{X+4*i}, v{X+4*i+1}
            v_max3_f32 v{M1}, v{M1}, v{X+4*i+2}, v{X+4*i+3}""")
    A(f"""v_add_u32 v6, 0x1000, v6
    s_add_u32 s20, s20, 1
    s_cmp_lt_u32 s20, 16
    s_cbranch_scc1 K2_P1
    v_max_f32 v{M0}, v{M0}, v{M1}
    s_nop 1
    v_mov_b32 v{M1}, v{M0}
    s_nop 1
    v_permlane32_swap_b32 v{M0}, v{M1}
    s_nop 1
    v_max_f32 v{M0}, v{M0}, v{M1}
    v_sub_f32 v{M0}, 0, v{M0}
    s_waitcnt lgkmcnt(0)
    s_nop 7
    s_nop 7
    s_branch K2_P2START
    K2_FIN:""")
    stamp(A, 1, 3)
    A(f"""v_rcp_f32 v{M0}, v{O+8}
    s_nop 0""")
    for r in range(8):
        A(f"v_mul_f32 v{O+r}, v{O+r}, v{M0}")
    for i in range(4):
        A(f"v_cvt_pk_bf16_f32 v{P+i}, v{O+2*i}, v{O+2*i+1}")
    A(f"""s_lshl_b32 s13, s12, 5
    s_add_u32 s13, s13, s4
    s_lshl_b32 s13, s13, 10
    s_add_u32 s13, s13, {WS_OB}
    buffer_store_dwordx4 {vr(P,4)}, v2, s[44:47], s13 offen""")
    BFT, AFT, ACT_, TT = 20, 84, 100, 120
    srd(A, 48, 34, 35, 512 * 512 * 2)
    srd(A, 52, 38, 39, 256)
    srd(A, 56, 36, 37, 2048 * 512 * 2)
    sync8(2, 0)
    stamp(A, 1, 4)
    A("""s_lshl_b32 s60, s5, 5
    v_mov_b32 v10, s60
    v_mov_b32 v11, 1
    s_cmp_eq_u32 s3, 0
    s_cbranch_scc0 K2T_NOARR
    s_mov_b64 exec, 1
    buffer_atomic_add v11, v10, s[52:55], 0 offen sc1
    s_mov_b64 exec, -1
    K2T_NOARR:""")
    A("""v_lshrrev_b32 v4, 3, v1
    v_lshlrev_b32 v4, 10, v4
    v_bfe_u32 v5, v1, 4, 1
    v_lshlrev_b32 v5, 2, v5
    v_and_b32 v6, 7, v1
    v_xor_b32 v5, v5, v6
    v_lshl_add_u32 v4, v5, 4, v4
    s_lshl_b32 s9, s27, 7
    v_add_u32 v8, s9, v4
    s_lshl_b32 s14, s3, 16
    s_lshl_b32 s15, s3, 13""")
    for q in range(8):
        A(f"""s_add_u32 m0, s15, {q*1024}
        s_add_u32 s16, s14, {q*8192}
        buffer_load_dwordx4 v8, s[48:51], s16 offen lds""")
    A("""s_and_b32 s61, s3, 1
    s_bfe_u32 s62, s3, 0x10001
    v_mov_b32 v134, 0x23000
    v_mov_b32 v135, 1
    s_waitcnt vmcnt(0)
    s_mov_b64 exec, 1
    ds_add_u32 v134, v135 offset:12
    s_mov_b64 exec, -1
    s_cmp_ge_u32 s3, 4
    s_cbranch_scc1 K2_END""")
    A("""v_bfe_u32 v5, v1, 2, 2
    v_lshrrev_b32 v6, 5, v1
    v_lshl_add_u32 v6, v6, 2, v5
    v_lshlrev_b32 v6, 7, v6
    v_bfe_u32 v7, v1, 0, 1
    v_lshl_add_u32 v6, v7, 5, v6
    v_bfe_u32 v7, v1, 4, 1
    v_lshl_add_u32 v6, v7, 4, v6
    v_bfe_u32 v7, v1, 1, 1
    v_lshl_add_u32 v6, v7, 3, v6
    v_bfe_u32 v7, v1, 3, 1
    v_xor_b32 v7, s62, v7
    v_lshl_add_u32 v3, v7, 6, v6""")
    A(f"""s_lshl_b32 s63, s26, 6
    s_lshl_b32 s64, s61, 5
    s_add_u32 s63, s63, s64
    v_and_b32 v7, 31, v1
    v_add_u32 v7, s63, v7
    v_lshlrev_b32 v9, 2, v7
    s_mov_b32 s64, {WS_G}
    buffer_load_dword v12, v9, s[44:47], s64 offen""")
    for i in range(16):
        A(f"v_mov_b32 v{ACT_+i}, 0")
    A(f"""s_lshl_b32 s16, s26, 1
    s_add_u32 s16, s16, s61
    s_lshl_b32 s16, s16, 15
    s_add_u32 s16, s16, {WS_OB}""")
    A("""s_cmp_eq_u32 s3, 0
    s_cbranch_scc0 K2T_WAITL
    K2T_POLL:
    buffer_load_dword v11, v10, s[52:55], 0 offen sc1
    s_waitcnt vmcnt(0)
    v_readfirstlane_b32 s21, v11
    s_cmp_ge_u32 s21, 32
    s_cbranch_scc1 K2T_GO
    s_sleep 1
    s_branch K2T_POLL
    K2T_GO:
    v_mov_b32 v135, 1
    ds_write_b32 v134, v135 offset:16
    s_branch K2T_RDY
    K2T_WAITL:
    ds_read_b32 v135, v134 offset:16
    s_waitcnt lgkmcnt(0)
    v_readfirstlane_b32 s21, v135
    s_cmp_eq_u32 s21, 0
    s_cbranch_scc0 K2T_RDY
    s_sleep 1
    s_branch K2T_WAITL
    K2T_RDY:""")
    stamp(A, 1, 5)
    for bt in range(2):
        for hd in range(16):
            if hd % 4 == 0:
                A(f"s_add_u32 s17, s16, {(bt*16+hd)*1024}")
            A(f"buffer_load_dwordx4 {vr(BFT+hd*4,4)}, v2, s[44:47], s17 offen offset:{(hd%4)*1024} sc1")
        if bt == 0:
            A("""K2T_WAIT3:
            ds_read_b64 v[136:137], v134 offset:12
            ds_read_b32 v135, v134 offset:20
            s_waitcnt lgkmcnt(0)
            v_readfirstlane_b32 s21, v136
            v_readfirstlane_b32 s22, v135
            s_cmp_ge_u32 s21, 8
            s_cbranch_scc0 K2T_WAIT3
            s_cmp_ge_u32 s22, 2
            s_cbranch_scc0 K2T_WAIT3""")
        for g4 in range(4):
            for kk in range(4):
                ks = bt * 16 + g4 * 4 + kk
                c, u = ks >> 1, ks & 1
                for rd in range(2):
                    A(f"ds_read_b64_tr_b16 {vr(AFT+kk*4+rd*2,2)}, v3 offset:{c*4096+(16*u+8*rd)*128}")
            A(f"s_waitcnt vmcnt({12-4*g4})")
            for kk in range(4):
                A(f"s_waitcnt lgkmcnt({6-2*kk})")
                acc = vr(ACT_, 16)
                A(f"v_mfma_f32_32x32x16_bf16 {acc}, {vr(AFT+kk*4,4)}, {vr(BFT+(g4*4+kk)*4,4)}, {acc}")
        if bt == 0:
            A("s_nop 7")
    stamp(A, 1, 6)
    A(f"""s_lshl_b32 s14, s62, 14
    s_lshl_b32 s15, s61, 11
    s_add_u32 s14, s14, s15
    s_add_u32 s14, s14, 0x20000
    v_lshlrev_b32 v5, 5, v1
    v_add_u32 v5, s14, v5
    ds_read_b128 {vr(TT+16,4)}, v5
    ds_read_b128 {vr(TT+20,4)}, v5 offset:16""")
    A("""v_lshlrev_b32 v8, 10, v7
    v_lshrrev_b32 v10, 5, v1
    v_lshl_add_u32 v8, v10, 5, v8
    s_lshl_b32 s14, s27, 7
    s_lshl_b32 s15, s62, 6
    s_add_u32 s14, s14, s15
    v_sub_f32 v10, 1.0, v12
    v_cvt_pk_bf16_f32 v11, v10, v10
    v_lshlrev_b32 v10, 16, v11
    s_waitcnt lgkmcnt(0)
    s_nop 7""")
    for i in range(8):
        a0, a1 = ACT_ + 2 * i, ACT_ + 2 * i + 1
        b0, b1 = 36 + 2 * i, 36 + 2 * i + 1
        A(f"""v_lshlrev_b32 v{b0}, 16, v{TT+16+i}
        v_and_b32 v{b1}, 0xffff0000, v{TT+16+i}""")
        bf16_round_pair(A, a0, a1, TT + 8)
        A(f"""v_mul_f32 v{a0}, v{a0}, v12
        v_mul_f32 v{a1}, v{a1}, v12
        v_mul_f32 v{b0}, v{b0}, v10
        v_mul_f32 v{b1}, v{b1}, v10""")
        bf16_round_pair(A, a0, a1, TT + 8)
        bf16_round_pair(A, b0, b1, TT + 9)
        A(f"""v_add_f32 v{a0}, v{a0}, v{b0}
        v_add_f32 v{a1}, v{a1}, v{b1}
        v_cvt_pk_bf16_f32 v{TT+i}, v{a0}, v{a1}""")
    stamp(A, 1, 7)
    A(f"""buffer_store_dwordx4 {vr(TT,4)}, v8, s[56:59], s14 offen
    buffer_store_dwordx4 {vr(TT+4,4)}, v8, s[56:59], s14 offen offset:16
    s_branch K2_END""")

    NS = 6
    BF = 16
    AF = 112
    ACC = 120
    A("K2_FFN:")
    srd(A, 40, 28, 29, 1376 * 512 * 2)
    A(f"""s_sub_u32 s3, s3, 8
    s_mov_b32 s4, s26
    s_mov_b32 s5, s27
    s_lshl_b32 s8, s4, 1
    s_mul_i32 s10, s8, 86
    s_lshl_b32 s10, s10, 10
    s_add_u32 s10, s10, {WS_ACT}
    s_add_u32 s11, s10, {86*1024}
    s_mov_b32 s14, 0
    s_lshl_b32 s15, s3, 14
    s_add_u32 s15, s15, 0x20000""")
    A("""v_lshrrev_b32 v4, 2, v1
    v_lshlrev_b32 v4, 10, v4
    v_and_b32 v6, 3, v1
    v_lshl_add_u32 v4, v6, 4, v4
    s_lshl_b32 s9, s5, 7
    s_lshl_b32 s12, s3, 6
    s_add_u32 s9, s9, s12
    v_add_u32 v8, s9, v4""")
    A("""v_bfe_u32 v5, v1, 2, 2
    v_lshrrev_b32 v6, 5, v1
    v_lshl_add_u32 v6, v6, 2, v5
    v_lshlrev_b32 v6, 6, v6
    v_add_u32 v6, s15, v6
    v_bfe_u32 v7, v1, 0, 1
    v_lshl_add_u32 v6, v7, 5, v6
    v_bfe_u32 v7, v1, 4, 1
    v_lshl_add_u32 v6, v7, 4, v6
    v_bfe_u32 v7, v1, 1, 1
    v_lshl_add_u32 v3, v7, 3, v6""")
    for i in range(32):
        A(f"v_mov_b32 v{ACC+i}, 0")

    def issue(stg):
        for q in range(2):
            A(f"""s_add_u32 m0, s15, {stg*2048 + q*1024}
            s_add_u32 s52, s14, {q*16384}
            buffer_load_dwordx4 v8, s[40:43], s52 offen lds""")
        for st in range(2):
            for u in range(2):
                A(f"buffer_load_dwordx4 {vr(BF+stg*16+(u*2+st)*4,4)}, v2, s[44:47], s{10+st} offen offset:{u*1024}")
        A("""s_add_u32 s14, s14, 32768
        s_add_u32 s10, s10, 2048
        s_add_u32 s11, s11, 2048""")

    for stg in range(NS - 1):
        issue(stg)
    A("""s_mov_b32 s53, 0
    K2F_LOOP:""")
    for stg in range(NS):
        issue((stg + NS - 1) % NS)
        A(f"s_waitcnt vmcnt({6*(NS-1)})")
        for u in range(2):
            for rd in range(2):
                A(f"ds_read_b64_tr_b16 {vr(AF+u*4+rd*2,2)}, v3 offset:{stg*2048+(16*u+8*rd)*64}")
        for u in range(2):
            A(f"s_waitcnt lgkmcnt({2 if u == 0 else 0})")
            for st in range(2):
                acc = vr(ACC + st * 16, 16)
                A(f"v_mfma_f32_32x32x16_bf16 {acc}, {vr(AF+u*4,4)}, {vr(BF+stg*16+(u*2+st)*4,4)}, {acc}")
        A("""s_add_u32 s53, s53, 1
        s_cmp_ge_u32 s53, 43
        s_cbranch_scc1 K2F_DONE""")
    A("s_branch K2F_LOOP")
    A(f"""K2F_DONE:
    s_waitcnt vmcnt(0)
    v_lshlrev_b32 v4, 5, v1
    v_add_u32 v4, s15, v4
    s_nop 15
    s_nop 3""")
    for st in range(2):
        for i in range(8):
            A(f"v_cvt_pk_bf16_f32 v{BF+st*8+i}, v{ACC+st*16+2*i}, v{ACC+st*16+2*i+1}")
        A(f"""ds_write_b128 v4, {vr(BF+st*8,4)} offset:{st*2048}
        ds_write_b128 v4, {vr(BF+st*8+4,4)} offset:{st*2048+16}""")
    A("""s_waitcnt lgkmcnt(0)
    v_mov_b32 v5, 0x23000
    v_mov_b32 v6, 1
    s_mov_b64 exec, 1
    ds_add_u32 v5, v6 offset:20
    s_mov_b64 exec, -1
    s_waitcnt lgkmcnt(0)
    K2_END:
    s_endpgm""")


def gen_k3(A):
    BF = 16
    AF = 80
    ACC = 96
    PB = 160
    T = 224
    A("k3_kernel:")
    A("""s_cmp_ge_u32 s2, 256
    s_cbranch_scc1 K3_END
    s_load_dwordx2 s[20:21], s[0:1], 16
    s_load_dwordx2 s[32:33], s[0:1], 80
    s_load_dwordx2 s[34:35], s[0:1], 64
    v_lshrrev_b32 v2, 6, v0
    v_and_b32 v1, 63, v0
    s_nop 0
    v_readfirstlane_b32 s3, v2
    s_lshr_b32 s4, s2, 3
    s_and_b32 s5, s2, 7
    s_waitcnt lgkmcnt(0)""")
    srd(A, 44, 32, 33, WS_SIZE)
    srd(A, 48, 34, 35, 2048 * 512 * 2)
    srd(A, 40, 20, 21, 512 * 512 * 2)
    stamp(A, 2, 0)
    A(f"""s_lshl_b32 s8, s4, 6
    s_lshl_b32 s13, s3, 3
    s_add_u32 s10, s8, s13
    s_lshl_b32 s10, s10, 10
    s_add_u32 s10, s10, {WS_OB}
    s_add_u32 s11, s10, 32768
    s_lshl_b32 s14, s3, 17
    s_lshl_b32 s15, s3, 14""")
    A("""v_lshrrev_b32 v4, 3, v1
    v_lshlrev_b32 v4, 10, v4
    v_bfe_u32 v5, v1, 4, 1
    v_lshlrev_b32 v5, 2, v5
    v_and_b32 v6, 7, v1
    v_xor_b32 v5, v5, v6
    v_lshl_add_u32 v4, v5, 4, v4
    s_lshl_b32 s9, s5, 7
    v_add_u32 v2, s9, v4""")
    A("""v_bfe_u32 v5, v1, 2, 2
    v_lshrrev_b32 v6, 5, v1
    v_lshl_add_u32 v6, v6, 2, v5
    v_lshlrev_b32 v6, 7, v6
    v_add_u32 v6, s15, v6
    v_bfe_u32 v7, v1, 0, 1
    v_lshl_add_u32 v6, v7, 5, v6
    v_bfe_u32 v7, v1, 4, 1
    v_lshl_add_u32 v6, v7, 4, v6
    v_bfe_u32 v7, v1, 1, 1
    v_lshl_add_u32 v6, v7, 3, v6
    v_bfe_u32 v7, v1, 3, 1
    v_lshl_add_u32 v3, v7, 6, v6
    v_xor_b32 v7, 1, v7
    v_lshl_add_u32 v4, v7, 6, v6
    v_lshlrev_b32 v5, 4, v1""")

    for stg in range(4):
        for q in range(4):
            A(f"""s_add_u32 m0, s15, {stg*4096 + q*1024}
            s_add_u32 s52, s14, {stg*32768 + q*8192}
            buffer_load_dwordx4 v2, s[40:43], s52 offen lds""")
        for st in range(2):
            for u in range(2):
                A(f"buffer_load_dwordx4 {vr(BF+stg*16+(u*2+st)*4,4)}, v5, s[44:47], s{10+st} offen offset:{u*1024}")
        A("""s_add_u32 s10, s10, 2048
        s_add_u32 s11, s11, 2048""")
    A(f"""s_lshl_b32 s16, s2, 2
    s_add_u32 s16, s16, s3
    s_lshl_b32 s16, s16, 11
    s_add_u32 s16, s16, {WS_PART}
    v_lshlrev_b32 v6, 5, v1
    buffer_load_dwordx4 {vr(PB,4)}, v6, s[44:47], s16 offen
    buffer_load_dwordx4 {vr(PB+4,4)}, v6, s[44:47], s16 offen offset:16""")
    A(f"""s_and_b32 s8, s3, 1
    s_lshr_b32 s9, s3, 1
    s_lshl_b32 s10, s4, 6
    s_lshl_b32 s11, s8, 5
    s_add_u32 s10, s10, s11
    v_and_b32 v7, 31, v1
    v_add_u32 v7, s10, v7
    v_lshlrev_b32 v8, 2, v7
    s_mov_b32 s12, {WS_G}
    buffer_load_dword v9, v8, s[44:47], s12 offen""")
    for i in range(64):
        A(f"v_mov_b32 v{ACC+i}, 0")
    stamp(A, 2, 1)
    for stg in range(4):
        A(f"s_waitcnt vmcnt({3 + 8*(3-stg)})")
        for u in range(2):
            for nt in range(2):
                for rd in range(2):
                    A(f"ds_read_b64_tr_b16 {vr(AF+(u*2+nt)*4+rd*2,2)}, v{3+nt} offset:{stg*4096+(16*u+8*rd)*128}")
        for u in range(2):
            A(f"s_waitcnt lgkmcnt({4 if u == 0 else 0})")
            for nt in range(2):
                for st in range(2):
                    acc = vr(ACC + (nt * 2 + st) * 16, 16)
                    A(f"v_mfma_f32_32x32x16_bf16 {acc}, {vr(AF+(u*2+nt)*4,4)}, {vr(BF+stg*16+(u*2+st)*4,4)}, {acc}")
    A("""s_nop 15
    s_nop 3""")
    stamp(A, 2, 2)
    A("""v_lshlrev_b32 v6, 4, v1
    v_add_u32 v6, s15, v6""")
    for tl in range(4):
        for q in range(4):
            A(f"ds_write_b128 v6, {vr(ACC+tl*16+q*4,4)} offset:{tl*4096+q*1024}")
    A("""s_waitcnt lgkmcnt(0)
    s_barrier
    s_lshl_b32 s13, s3, 12
    v_lshlrev_b32 v6, 4, v1
    v_add_u32 v6, s13, v6""")
    for w in range(4):
        for q in range(4):
            A(f"ds_read_b128 {vr(ACC+w*16+q*4,4)}, v6 offset:{w*16384+q*1024}")
    A("""v_lshlrev_b32 v8, 10, v7
    v_lshrrev_b32 v10, 5, v1
    v_lshl_add_u32 v8, v10, 5, v8
    s_lshl_b32 s14, s5, 7
    s_lshl_b32 s15, s9, 6
    s_add_u32 s14, s14, s15
    s_waitcnt vmcnt(0) lgkmcnt(0)
    v_sub_f32 v10, 1.0, v9
    v_cvt_pk_bf16_f32 v11, v10, v10
    v_lshlrev_b32 v10, 16, v11""")
    for i in range(8):
        a0, a1 = ACC + 2 * i, ACC + 2 * i + 1
        b0, b1 = PB + 16 + 2 * i, PB + 16 + 2 * i + 1
        A(f"""v_add_f32 v{a0}, v{a0}, v{a0+16}
        v_add_f32 v{a1}, v{a1}, v{a1+16}
        v_add_f32 v{a0+32}, v{a0+32}, v{a0+48}
        v_add_f32 v{a1+32}, v{a1+32}, v{a1+48}
        v_add_f32 v{a0}, v{a0}, v{a0+32}
        v_add_f32 v{a1}, v{a1}, v{a1+32}
        v_lshlrev_b32 v{b0}, 16, v{PB+i}
        v_and_b32 v{b1}, 0xffff0000, v{PB+i}""")
        bf16_round_pair(A, a0, a1, T + 16)
        A(f"""v_mul_f32 v{a0}, v{a0}, v9
        v_mul_f32 v{a1}, v{a1}, v9
        v_mul_f32 v{b0}, v{b0}, v10
        v_mul_f32 v{b1}, v{b1}, v10""")
        bf16_round_pair(A, a0, a1, T + 16)
        bf16_round_pair(A, b0, b1, T + 17)
        A(f"""v_add_f32 v{a0}, v{a0}, v{b0}
        v_add_f32 v{a1}, v{a1}, v{b1}
        v_cvt_pk_bf16_f32 v{T+i}, v{a0}, v{a1}""")
    stamp(A, 2, 3)
    A(f"""buffer_store_dwordx4 {vr(T,4)}, v8, s[48:51], s14 offen
    buffer_store_dwordx4 {vr(T+4,4)}, v8, s[48:51], s14 offen offset:16
    K3_END:
    s_endpgm""")


HEADER = """; Kernarg layout for this problem (88 bytes, ptrs only, base s[0:1]):
; @launch kernel=k1_kernel grid=(256,1,1) block=(512,1,1) lds=135168
; @launch kernel=k2_kernel grid=(256,1,1) block=(640,1,1) lds=163840
.amdgcn_target "amdgcn-amd-amdhsa--gfx950"
.text
"""


def kd(name, vgpr, sgpr=102):
    acc = (vgpr + 3) // 4 * 4
    return f""".amdhsa_kernel {name}
  .amdhsa_next_free_vgpr {vgpr}
  .amdhsa_next_free_sgpr {sgpr}
  .amdhsa_accum_offset {acc}
  .amdhsa_group_segment_fixed_size 0
  .amdhsa_kernarg_size 88
  .amdhsa_user_sgpr_count 2
  .amdhsa_user_sgpr_kernarg_segment_ptr 1
  .amdhsa_system_sgpr_workgroup_id_x 1
.end_amdhsa_kernel
"""


def main():
    out = HEADER
    for nm, fn in (("k1_kernel", gen_k1), ("k2_kernel", gen_k2)):
        A = Asm()
        A.lab = {"k1_kernel": 1000, "k2_kernel": 2000, "k3_kernel": 3000}[nm]
        fn(A)
        out += f".globl {nm}\n.p2align 8\n.type {nm},@function\n" + A.text()
    out += '.section .rodata,"a"\n'
    for nm, v in (("k1_kernel", 192), ("k2_kernel", 168)):
        if "stamp" in FL:
            v = 256 if nm != "k2_kernel" else 168
        out += ".p2align 6\n" + kd(nm, v)
    path = sys.argv[1] if len(sys.argv) > 1 else f"cdna_kernels/{NAME}.s"
    open(path, "w").write(out)


if __name__ == "__main__":
    main()
```
